```python
import torch

def _softmax(x, axis=-1):
    return torch.softmax(x, dim=axis)
def _gelu(x):
    return torch.nn.functional.gelu(x, approximate="tanh")
def _silu(x):
    return torch.nn.functional.silu(x)
def _sigmoid(x):
    return torch.sigmoid(x)
def _layernorm(x, axis=-1, eps=1e-5):
    m = x.mean(dim=axis, keepdim=True)
    v = x.var(dim=axis, keepdim=True, unbiased=False)
    return (x - m) / torch.sqrt(v + eps)
def _scatter_add(tgt, idx, src, axis=0):
    return tgt.clone().index_add_(axis, idx, src)
def _segment_sum(src, seg, n):
    out = torch.zeros((n,) + src.shape[1:], dtype=src.dtype)
    return out.index_add_(0, seg, src)
def _pad(x, pw):
    flat = tuple(v for pair in reversed(pw) for v in pair)
    return torch.nn.functional.pad(x, flat)

kernel_name = 'concat_heads__linear_attn_block__ssm_conv_s4d__prompt'

def setup_inputs():

    _w = (lambda a: (lambda t: t.to(torch.bfloat16) if t.is_floating_point() else t)(torch.as_tensor(a)))
    def _A_setup():
        B, S, D = 1, 2048, 1024
        return {
            "x": _w((lambda *s: torch.randn(*s, dtype=torch.bfloat16) * 0.05)(B, S, D)),
            "wqkv": _w((lambda *s: torch.randn(*s, dtype=torch.bfloat16) * 0.8)(D, 3 * D)),
            "wo": _w((lambda *s: torch.randn(*s, dtype=torch.bfloat16) * 0.05)(D, D)),
        }
    _A_in = _A_setup()

    def _B_setup():
        Bsz, L, D, N = 1, 2048, 1024, 128
        return {
            "u": _w((lambda *s: torch.randn(*s, dtype=torch.bfloat16) * 0.05)(Bsz, L, D)),
            "log_A_real": _w((lambda *s: torch.randn(*s, dtype=torch.bfloat16) * 3.2)(D, N) * 0.5),
            "A_imag": _w((lambda *s: torch.randn(*s, dtype=torch.bfloat16) * 0.05)(D, N) * 3.14),
            "C_real": _w((lambda *s: torch.randn(*s, dtype=torch.bfloat16) * 0.8)(D, N) / N ** 0.5),
            "C_imag": _w((lambda *s: torch.randn(*s, dtype=torch.bfloat16) * 0.8)(D, N) / N ** 0.5),
            "log_dt": _w((lambda *s: torch.randn(*s, dtype=torch.bfloat16) * 0.05)(D) * 0.5 - 4.0),
            "D_skip": _w((lambda *s: torch.randn(*s, dtype=torch.bfloat16) * 0.1)(D)),
        }
    _B_in = _B_setup()

    return {
        "A_x": _A_in["x"],
        "A_wqkv": _A_in["wqkv"],
        "A_wo": _A_in["wo"],
        "B_u": _B_in["u"],
        "B_log_A_real": _B_in["log_A_real"],
        "B_A_imag": _B_in["A_imag"],
        "B_C_real": _B_in["C_real"],
        "B_C_imag": _B_in["C_imag"],
        "B_log_dt": _B_in["log_dt"],
        "B_D_skip": _B_in["D_skip"],
    }

def reference(A_x, A_wqkv, A_wo, B_u, B_log_A_real, B_A_imag, B_C_real, B_C_imag, B_log_dt, B_D_skip):
    def _A_ref(x, wqkv, wo):
        B, S, D = x.shape
        H = 32; Dh = D // H
        qkv = (lambda x, *d: x.permute(*d))((x @ wqkv).reshape(B, S, 3, H, Dh), 2, 0, 3, 1, 4)
        q, k, v = qkv[0], qkv[1], qkv[2]
        phi = lambda t: torch.where(t > 0, t + 1, torch.exp(t)) + 1e-6
        pq, pk = phi(q), phi(k)
        kv = torch.einsum("bhsd,bhse->bhde", pk, v)
        z = torch.einsum("bhsd->bhd", pk)
        num = torch.einsum("bhqd,bhde->bhqe", pq, kv)
        den = torch.einsum("bhqd,bhd->bhq", pq, z)[..., None] + 1e-6
        o = num / den
        return (lambda x, *d: x.permute(*d))(o, 0, 2, 1, 3).reshape(B, S, D) @ wo

    def _B_ref(u, log_A_real, A_imag, C_real, C_imag, log_dt, D_skip):
        L = u.shape[1]
        dt = torch.exp(log_dt)
        A = -torch.exp(log_A_real) + 1j * A_imag
        C = (C_real + 1j * C_imag) * dt[:, None]
        pos = (lambda x, dt: x.to(dt))(torch.arange(L), log_dt.dtype)
        P = torch.exp((A * dt[:, None])[:, :, None] * pos[None, None, :])
        K = 2.0 * torch.einsum("dn,dnl->dl", C, P).real
        L2 = 2 * L
        u_t = (lambda x, *d: x.permute(*d))(u, 0, 2, 1)
        Kf = (lambda x, *a, **k: torch.fft.rfft(x.float(), *a, **k))(K, L2)
        Uf = (lambda x, *a, **k: torch.fft.rfft(x.float(), *a, **k))(u_t, L2)
        y = (lambda x, *a, **k: torch.fft.irfft(x, *a, **k).to(torch.bfloat16))(Uf * Kf[None, :, :], L2)[:, :, :L]
        y = (lambda x, *d: x.permute(*d))(y, 0, 2, 1)
        return y + u * D_skip[None, None, :]

    a = _A_ref(A_x, A_wqkv, A_wo)
    b = _B_ref(B_u, B_log_A_real, B_A_imag, B_C_real, B_C_imag, B_log_dt, B_D_skip)
    return torch.concatenate([a, b], axis=-1)
```

```python
import re

TRANS = ("v_exp_f32", "v_log_f32", "v_rcp_f32", "v_rsq_f32", "v_sqrt_f32", "v_sin_f32", "v_cos_f32", "v_rcp_iflag_f32")
REG_RE = re.compile(r"\b([vs])(\d+)\b|\b([vs])\[(\d+):(\d+)\]|\b(vcc|exec|m0|scc)\b")

def regs_of(tok):
    out = []
    for m in REG_RE.finditer(tok):
        if m.group(1):
            out.append((m.group(1), int(m.group(2))))
        elif m.group(3):
            for i in range(int(m.group(4)), int(m.group(5)) + 1):
                out.append((m.group(3), i))
        else:
            out.append((m.group(6), 0))
    return out

def split_ops(s):
    ops, depth, cur = [], 0, ""
    for ch in s:
        if ch == "[": depth += 1
        if ch == "]": depth -= 1
        if ch == "," and depth == 0:
            ops.append(cur.strip()); cur = ""
        else:
            cur += ch
    if cur.strip(): ops.append(cur.strip())
    return ops

class Ins:
    __slots__ = ("text", "op", "kind", "w", "r", "passes", "ws", "mA", "mC", "store_wide", "is_lds_dma", "rmask")
    def __init__(self, text):
        self.text = text
        t = text.split(";")[0].strip()
        self.op = None; self.kind = "none"; self.w = []; self.r = []; self.passes = 0; self.ws = 0
        self.mA = []; self.mC = []; self.store_wide = []; self.is_lds_dma = False; self.rmask = []
        if not t or t.endswith(":") or t.startswith("."):
            return
        parts = t.split(None, 1)
        op = parts[0]; self.op = op
        rest = parts[1] if len(parts) > 1 else ""
        ops = split_ops(rest)
        self.ws = 1
        if op == "s_nop":
            self.ws = int(ops[0], 0) + 1; self.kind = "nop"; return
        if op in ("s_waitcnt", "s_barrier", "s_endpgm", "s_setprio", "s_sleep") or op.startswith("s_cbranch") or op == "s_branch":
            self.kind = "ctl"; return
        R = lambda xs: [g for x in xs for g in regs_of(x)]
        if op.startswith("v_mfma"):
            self.kind = "mfma"
            self.passes = 8 if "32x32x16" in op else (4 if "16x16x32" in op else 16)
            self.w = R(ops[:1]); self.mA = R(ops[1:3]); self.mC = R(ops[3:4]); self.r = self.mA + self.mC
            return
        if op.startswith("buffer_store") or op.startswith("global_store") or op.startswith("ds_write"):
            self.kind = "ds" if op.startswith("ds_") else "vmem"
            self.r = R(ops)
            if self.kind == "vmem" and ("x4" in op or "x3" in op):
                data = ops[0] if op.startswith("buffer") else ops[1]
                self.store_wide = regs_of(data)
            return
        if op.startswith("buffer_load") or op.startswith("global_load"):
            self.kind = "vmem"
            if re.search(r"\blds\b", rest) or "_lds_" in op:
                self.is_lds_dma = True; self.r = R(ops) + [("m0", 0)]
            else:
                self.w = R(ops[:1]); self.r = R(ops[1:])
            return
        if op.startswith("buffer_atomic") or op.startswith("global_atomic"):
            self.kind = "vmem"; self.r = R(ops); return
        if op.startswith("ds_"):
            self.kind = "ds"; self.w = R(ops[:1]); self.r = R(ops[1:])
            if "d16" in op: self.r += self.w
            return
        if op.startswith("s_load") or op.startswith("s_memtime") or op.startswith("s_memrealtime"):
            self.kind = "smem"; self.w = R(ops[:1]); self.r = R(ops[1:]); return
        if op.startswith("s_"):
            self.kind = "salu"
            if op.startswith("s_cmp"):
                self.r = R(ops); return
            self.w = R(ops[:1]); self.r = R(ops[1:])
            if "saveexec" in op: self.w += [("exec", 0)]
            return
        if op.startswith("v_"):
            self.kind = "trans" if op.split("_e")[0] in TRANS else "valu"
            if op.startswith("v_cmp"):
                self.w = R(ops[:1]); self.r = R(ops[1:]); return
            if op.startswith("v_permlane"):
                self.w = R(ops); self.r = R(ops); self.kind = "permlane"; return
            if op.startswith("v_add_co") or op.startswith("v_sub_co") or op.startswith("v_addc") or op.startswith("v_subb"):
                self.w = R(ops[:2]); self.r = R(ops[2:]); return
            self.w = R(ops[:1]); self.r = R(ops[1:])
            if op.startswith("v_cndmask"):
                if len(ops) == 3: self.r += [("vcc", 0)]
            if op.startswith("v_fmac") or op.startswith("v_pk_fmac"): self.r += self.w
            return
        raise ValueError("unknown instr " + text)

def is_valu(i): return i.kind in ("valu", "trans", "permlane")

def need_between(p, c):
    n = 0
    pw = set(p.w); cr = set(c.r); cw = set(c.w)
    if is_valu(p):
        vw = {x for x in pw if x[0] == "v"}
        sw = {x for x in pw if x[0] in ("s", "vcc")}
        if c.kind == "mfma" and vw & cr: n = max(n, 2)
        if c.kind == "vmem" and sw & cr: n = max(n, 5)
        if is_valu(c) and sw & cr: n = max(n, 4 if c.op.startswith("v_readlane") or c.op.startswith("v_writelane") else 2)
        if c.op and (c.op.startswith("v_readfirstlane") or c.op.startswith("v_readlane")) and vw & cr: n = max(n, 1)
        if p.kind == "trans" and is_valu(c) and c.kind != "trans" and vw & cr: n = max(n, 1)
        if c.kind == "permlane" and vw & cr: n = max(n, 2)
        if "dpp" in c.text and vw & cr: n = max(n, 2)
        if c.kind == "salu" and sw & cr: n = max(n, 1)
    if p.kind == "mfma":
        big = {2: 5, 4: 8, 8: 12, 16: 20}[p.passes]
        if c.kind == "mfma":
            if pw & set(c.mA): n = max(n, big)
            if pw & set(c.mC):
                if not (set(c.mC) == pw and c.passes == p.passes): n = max(n, {2: 4, 4: 6, 8: 10, 16: 18}[p.passes])
        elif c.kind in ("valu", "trans", "permlane", "vmem", "ds"):
            if pw & (cr | cw): n = max(n, big)
            if is_valu(c) and set(p.mC) & cw: n = max(n, {2: 1, 4: 3, 8: 7, 16: 15}[p.passes])
    if p.kind == "salu" and ("m0", 0) in pw and (c.is_lds_dma): n = max(n, 1)
    if p.store_wide and set(p.store_wide) & cw: n = max(n, 2 if is_valu(c) else 1)
    return n

class Asm:
    def __init__(self):
        self.ins = []
    def __call__(self, text):
        for line in text.split("\n"):
            line = line.strip()
            if line: self.ins.append(Ins(line))
    def label(self, name): self.ins.append(Ins(name + ":"))
    def finalize(self):
        out = []
        for c in self.ins:
            if c.ws:
                need = 0; dist = 0
                for p in reversed(out):
                    if dist >= 24: break
                    if p.ws == 0: continue
                    k = need_between(p, c)
                    if k > dist: need = max(need, k - dist)
                    dist += p.ws
                while need > 0:
                    k = min(need, 16)
                    out.append(Ins(f"s_nop {k-1}")); need -= k
            out.append(c)
        self.ins = out
        return "\n".join(("    " + i.text) if i.ws else i.text for i in out)
```

```python
from asmlib import Asm
from layout import *
import struct, math

def f2u(x): return struct.unpack("<I", struct.pack("<f", x))[0]
L2E = math.log2(math.e)
L2E_HI = struct.unpack("<f", struct.pack("<I", 0x3fb8aa3b))[0]
L2E_LO = L2E - L2E_HI

def gen_aux(a: Asm):
    TP = 272
    KG0 = 64 * TP
    KGW = 6912
    a(f"""
    s_load_dwordx2 s[38:39], s[0:1], 24      ; u
    s_load_dwordx8 s[48:55], s[0:1], 32
    s_load_dwordx2 s[56:57], s[0:1], 64      ; log_dt
    s_sub_u32 s16, s2, 256
    v_and_b32 v1, 63, v0
    v_lshrrev_b32 v2, 6, v0
    s_nop 0
    v_readfirstlane_b32 s22, v2
    s_waitcnt lgkmcnt(0)
    s_mov_b32 s4, s38
    s_mov_b32 s5, s39
    s_mov_b32 s6, 0x400000
    s_mov_b32 s7, 0x00020000
    s_mov_b32 s12, s36
    s_mov_b32 s13, s37
    s_mov_b32 s14, 0x10000000
    s_mov_b32 s15, 0x00020000
    s_and_b32 s17, s16, 31
    s_lshl_b32 s17, s17, 6           ; l0
    s_lshr_b32 s18, s16, 5
    s_lshl_b32 s18, s18, 7           ; d0
    v_lshrrev_b32 v2, 4, v0          ; row (0..15) + 16 i
    v_and_b32 v3, 15, v0
    v_add_u32 v4, s17, v2
    v_lshlrev_b32 v4, 11, v4
    v_lshlrev_b32 v5, 4, v3
    v_add_u32 v4, v4, v5
    s_lshl_b32 s19, s18, 1
    v_add_u32 v4, s19, v4
    v_mul_u32_u24 v6, {TP}, v2
    v_add_u32 v6, v6, v5
    s_mov_b32 s19, 32768
    s_mov_b32 s20, 65536
    s_mov_b32 s21, 98304
    buffer_load_dwordx4 v[16:19], v4, s[4:7], 0 offen
    buffer_load_dwordx4 v[20:23], v4, s[4:7], s19 offen
    buffer_load_dwordx4 v[24:27], v4, s[4:7], s20 offen
    buffer_load_dwordx4 v[28:31], v4, s[4:7], s21 offen
    """)
    a(f"""
    s_lshl_b32 s23, s16, 2
    s_add_u32 s23, s23, s22          ; d
    s_lshl_b32 s24, s23, 8           ; d*256 bytes
    v_lshlrev_b32 v7, 1, v1          ; lane*2
    s_mov_b32 s10, 0x40000
    s_mov_b32 s11, 0x00020000
    """)
    for idx, (lo, hi) in enumerate(((48, 49), (50, 51), (52, 53), (54, 55))):
        a(f"""
        s_mov_b32 s8, s{lo}
        s_mov_b32 s9, s{hi}
        buffer_load_ushort v{32+2*idx}, v7, s[8:11], s24 offen
        buffer_load_ushort v{33+2*idx}, v7, s[8:11], s24 offen offset:128
        """)
    a(f"""
    s_mov_b32 s8, s56
    s_mov_b32 s9, s57
    s_mov_b32 s10, 2048
    s_lshl_b32 s25, s23, 1
    v_mov_b32 v8, s25
    buffer_load_ushort v40, v8, s[8:11], 0 offen
    s_waitcnt vmcnt(9)
    ds_write_b128 v6, v[16:19]
    ds_write_b128 v6, v[20:23] offset:{16*TP}
    ds_write_b128 v6, v[24:27] offset:{32*TP}
    ds_write_b128 v6, v[28:31] offset:{48*TP}
    s_waitcnt lgkmcnt(0)
    s_barrier
    v_and_b32 v2, 15, v1
    v_lshrrev_b32 v3, 2, v2          ; r
    v_and_b32 v4, 3, v2              ; c
    v_lshrrev_b32 v5, 4, v1          ; g
    v_lshlrev_b32 v6, 3, v5
    v_add_u32 v6, v6, v3             ; 8g + r
    v_sub_u32 v6, 27, v6
    v_mul_u32_u24 v6, {TP}, v6
    v_lshlrev_b32 v4, 3, v4
    v_add_u32 v6, v6, v4
    s_lshl_b32 s19, s22, 6
    v_add_u32 v6, s19, v6            ; + 64 w bytes
    """)
    for cg in range(2):
        for lh in range(2):
            for h in range(2):
                off = (32 * (1 - lh) + 4 * (1 - h)) * TP + 32 * cg
                d = 16 + 8 * (2 * cg + lh) // 2 * 1
                reg = 16 + 4 * (2 * cg + lh) + 2 * h
                a(f"ds_read_b64_tr_b16 v[{reg}:{reg+1}], v6 offset:{off}")
    a(f"""
    s_lshl_b32 s19, s22, 5
    s_add_u32 s19, s19, s18
    v_add_u32 v2, s19, v2
    v_lshlrev_b32 v2, 12, v2
    v_lshlrev_b32 v5, 4, v5
    v_add_u32 v2, v2, v5
    s_sub_u32 s19, 1984, s17
    s_lshl_b32 s19, s19, 1
    s_add_u32 s19, s19, {WS_UT}
    s_add_u32 s20, s19, 65536
    s_waitcnt lgkmcnt(0)
    buffer_store_dwordx4 v[16:19], v2, s[12:15], s19 offen
    buffer_store_dwordx4 v[20:23], v2, s[12:15], s19 offen offset:64
    buffer_store_dwordx4 v[24:27], v2, s[12:15], s20 offen
    buffer_store_dwordx4 v[28:31], v2, s[12:15], s20 offen offset:64
    """)
    a(f"""
    s_mul_i32 s26, s22, {KGW}
    s_add_u32 s26, s26, {KG0}
    s_mov_b32 s40, 0x3fb8aa3b
    s_mov_b32 s41, {f2u(L2E_LO)}
    s_mov_b32 s42, {f2u(math.log(2.0))}
    s_mov_b32 s43, {f2u(1.0/(2*math.pi))}
    s_waitcnt vmcnt(4)
    """)
    for i in range(9): a(f"v_lshlrev_b32 v{32+i}, 16, v{32+i}")
    def exp_bf16(dst, src, t):
        a(f"""
        v_mul_f32 v{t}, s40, v{src}
        v_fma_f32 v{t+1}, v{src}, s40, -v{t}
        v_fma_f32 v{t+1}, v{src}, s41, v{t+1}
        v_exp_f32 v{t}, v{t}
        v_mul_f32 v{t+1}, s42, v{t+1}
        v_fma_f32 v{t}, v{t}, v{t+1}, v{t}
        v_cvt_pk_bf16_f32 v{t}, v{t}, v{t}
        v_lshlrev_b32 v{dst}, 16, v{t}
        """)
    exp_bf16(40, 40, 44)
    exp_bf16(32, 32, 44)
    exp_bf16(33, 33, 46)
    a("v_add_f32 v41, v40, v40")
    for h in range(2):
        P = 48 + 4 * h
        a(f"""
        v_mul_f32 v{P}, v{32+h}, v40
        v_mul_f32 v{P+1}, v{34+h}, v40
        v_mul_f32 v{P+2}, v{36+h}, v41
        v_mul_f32 v{P+3}, v{38+h}, v41
        v_mul_f32 v{P}, s40, v{P}
        v_mul_f32 v{P+1}, s43, v{P+1}
        v_sub_f32 v{P}, 0, v{P}
        """)
    a(f"""
    v_lshlrev_b32 v2, 4, v1
    v_add_u32 v2, s26, v2
    ds_write_b128 v2, v[48:51]
    ds_write_b128 v2, v[52:55] offset:1024
    v_and_b32 v3, 15, v1             ; idx
    v_lshrrev_b32 v4, 4, v1          ; T
    v_and_b32 v5, 7, v3
    v_lshrrev_b32 v6, 3, v3
    v_lshl_add_u32 v5, v6, 7, v5     ; p0
    v_and_b32 v6, 3, v3
    v_lshlrev_b32 v6, 1, v6
    v_lshrrev_b32 v7, 2, v3
    v_lshl_add_u32 v6, v7, 7, v6
    v_add_u32 v6, 256, v6            ; p1a
    v_and_b32 v7, 1, v3
    v_lshlrev_b32 v7, 2, v7
    v_lshrrev_b32 v8, 1, v3
    v_and_b32 v8, 3, v8
    v_lshl_add_u32 v7, v8, 7, v7
    v_add_u32 v7, 512, v7            ; p1b
    v_cmp_gt_u32 vcc, 8, v3
    v_cndmask_b32 v6, v7, v6, vcc    ; p1
    v_lshlrev_b32 v7, 7, v3
    v_add_u32 v7, 1024, v7
    v_min_u32 v7, 2176, v7           ; p2
    v_cmp_eq_u32 vcc, 1, v4
    v_cndmask_b32 v5, v5, v6, vcc
    v_cmp_le_u32 vcc, 2, v4
    v_cndmask_b32 v5, v5, v7, vcc
    v_lshlrev_b32 v6, 2, v1
    v_add_u32 v6, s26, v6
    ds_write_b32 v6, v5 offset:6656
    s_waitcnt lgkmcnt(0)
    v_lshlrev_b32 v6, 2, v3
    v_add_u32 v6, s26, v6
    ds_read_b32 v8, v6 offset:6656
    ds_read_b32 v10, v6 offset:6720
    ds_read_b32 v12, v6 offset:6784
    v_lshlrev_b32 v14, 3, v3
    v_cvt_f32_u32 v14, v14           ; 8*lo
    v_mov_b32 v15, v14
    v_lshlrev_b32 v7, 6, v4
    v_add_u32 v7, s26, v7
    s_waitcnt lgkmcnt(0)
    v_cvt_f32_u32 v8, v8
    v_cvt_f32_u32 v10, v10
    v_cvt_f32_u32 v12, v12
    v_mov_b32 v9, v8
    v_mov_b32 v11, v10
    v_mov_b32 v13, v12
    """)
    PR = 16
    TMP = 32
    AH = 64
    AL = 76
    BH = 88
    BL = 92
    AC = 96
    def evals(pf, post):
        M = range(4)
        for m in M: a(f"v_pk_mul_f32 v[{TMP+8*m}:{TMP+8*m+1}], v[{PR+4*m}:{PR+4*m+1}], v[{pf}:{pf+1}]")
        for m in M: a(f"v_fract_f32 v{TMP+8*m+1}, v{TMP+8*m+1}")
        for m in M: a(f"v_exp_f32 v{TMP+8*m}, v{TMP+8*m}")
        for m in M: a(f"v_cos_f32 v{TMP+8*m+2}, v{TMP+8*m+1}")
        for m in M: a(f"v_sin_f32 v{TMP+8*m+3}, v{TMP+8*m+1}")
        for m in M: a(f"v_mul_f32 v{TMP+8*m+4}, v{TMP+8*m}, v{TMP+8*m+2}")
        for m in M: a(f"v_mul_f32 v{TMP+8*m+5}, v{TMP+8*m}, v{TMP+8*m+3}")
    def split(hi, lo):
        M = range(4)
        for m in M: a(f"v_cvt_pk_bf16_f32 v{hi+m}, v{TMP+8*m+4}, v{TMP+8*m+5}")
        for m in M: a(f"v_lshlrev_b32 v{TMP+8*m+6}, 16, v{hi+m}")
        for m in M: a(f"v_and_b32 v{TMP+8*m+7}, 0xffff0000, v{hi+m}")
        for m in M: a(f"v_pk_add_f32 v[{TMP+8*m+6}:{TMP+8*m+7}], v[{TMP+8*m+4}:{TMP+8*m+5}], v[{TMP+8*m+6}:{TMP+8*m+7}] neg_lo:[0,1] neg_hi:[0,1]")
        for m in M: a(f"v_cvt_pk_bf16_f32 v{lo+m}, v{TMP+8*m+6}, v{TMP+8*m+7}")
    for i in range(12): a(f"v_mov_b32 v{AC+i}, 0")
    a("s_mov_b32 s27, 0")
    a.label("L_kg_loop")
    for m in range(4):
        a(f"ds_read_b128 v[{PR+4*m}:{PR+4*m+3}], v7 offset:{16*m}")
    a("v_add_u32 v7, 256, v7\ns_waitcnt lgkmcnt(0)")
    evals(14, None)
    M = range(4)
    for m in M: a(f"v_mul_f32 v{TMP+8*m}, v{PR+4*m+3}, v{TMP+8*m+5}")
    for m in M: a(f"v_mul_f32 v{TMP+8*m+1}, v{PR+4*m+2}, v{TMP+8*m+5}")
    for m in M: a(f"v_fma_f32 v{TMP+8*m+5}, -v{PR+4*m+3}, v{TMP+8*m+4}, -v{TMP+8*m+1}")
    for m in M: a(f"v_fma_f32 v{TMP+8*m+4}, v{PR+4*m+2}, v{TMP+8*m+4}, -v{TMP+8*m}")
    split(BH, BL)
    for T in range(3):
        evals(8 + 2 * T, None)
        split(AH + 4 * T, AL + 4 * T)
        C = f"v[{AC+4*T}:{AC+4*T+3}]"
        a(f"v_mfma_f32_16x16x32_bf16 {C}, v[{AH+4*T}:{AH+4*T+3}], v[{BH}:{BH+3}], {C}")
        a(f"v_mfma_f32_16x16x32_bf16 {C}, v[{AH+4*T}:{AH+4*T+3}], v[{BL}:{BL+3}], {C}")
        a(f"v_mfma_f32_16x16x32_bf16 {C}, v[{AL+4*T}:{AL+4*T+3}], v[{BH}:{BH+3}], {C}")
    a("s_add_u32 s27, s27, 1\ns_cmp_lt_u32 s27, 8\ns_cbranch_scc1 L_kg_loop")
    a(f"""
    v_lshlrev_b32 v6, 4, v4          ; g*16 bytes
    v_add_u32 v6, s26, v6
    ds_read_b128 v[16:19], v6 offset:6656
    ds_read_b128 v[20:23], v6 offset:6720
    ds_read_b128 v[24:27], v6 offset:6784
    v_lshlrev_b32 v5, 4, v3
    v_add_u32 v5, s26, v5
    s_waitcnt lgkmcnt(0)
    """)
    for i in range(12):
        a(f"v_lshl_add_u32 v{16+i}, v{16+i}, 1, v5")
    for i in range(0, 12, 2):
        a(f"v_cvt_pk_bf16_f32 v{32+i}, v{AC+i}, v{AC+i+1}")
    for i in range(0, 12, 2):
        a(f"ds_write_b16 v{16+i}, v{32+i} offset:2048")
        a(f"ds_write_b16_d16_hi v{16+i+1}, v{32+i} offset:2048")
    a("s_waitcnt lgkmcnt(0)")
    a(f"""
    v_lshlrev_b32 v2, 3, v1
    v_cvt_f32_u32 v2, v2             ; float(8*lane)
    v_lshlrev_b32 v3, 4, v1
    s_lshl_b32 s28, s23, 12
    s_add_u32 s28, s28, {WS_KT}
    s_add_u32 s29, s26, 2048
    s_mov_b32 s30, 0xffff0000
    """)
    for i in range(4):
        for jp in range(4):
            t = 16 + 4 * jp
            a(f"""
            v_add_f32 v{t}, {float(512*i + 2*jp)!r}, v2
            v_add_f32 v{t+1}, {float(512*i + 2*jp + 1)!r}, v2
            """)
        for jp in range(4):
            t = 16 + 4 * jp
            a(f"v_cvt_pk_bf16_f32 v{t}, v{t}, v{t+1}")
        for jp in range(4):
            t = 16 + 4 * jp
            a(f"v_and_b32 v{t+1}, 0xffff0000, v{t}\nv_lshlrev_b32 v{t}, 16, v{t}")
        for jp in range(4):
            t = 16 + 4 * jp
            a(f"v_cvt_u32_f32 v{t}, v{t}\nv_cvt_u32_f32 v{t+1}, v{t+1}")
        for jp in range(4):
            t = 16 + 4 * jp
            a(f"v_lshl_add_u32 v{t}, v{t}, 1, s29\nv_lshl_add_u32 v{t+1}, v{t+1}, 1, s29")
        o = 32 + 4 * i
        for jp in range(4):
            t = 16 + 4 * jp
            a(f"ds_read_u16 v{o+jp}, v{t}\nds_read_u16_d16_hi v{o+16+jp}, v{t+1}")
    a("s_waitcnt lgkmcnt(0)")
    for i in range(16):
        a(f"v_and_or_b32 v{32+i}, v{48+i}, s30, v{32+i}")
    for i in range(4):
        a(f"buffer_store_dwordx4 v[{32+4*i}:{35+4*i}], v3, s[12:15], s28 offen offset:{1024*i}")
    a("s_endpgm")
```

```python
from asmlib import Asm
from layout import *

def gen_gemm1(a: Asm):
    ACC = 16
    F0, F1 = 112, 132
    SLOT = 20480
    a(f"""
    v_and_b32 v1, 63, v0
    v_lshrrev_b32 v2, 6, v0
    s_nop 0
    v_readfirstlane_b32 s22, v2
    s_and_b32 s16, s2, 7
    s_lshr_b32 s17, s2, 3
    s_and_b32 s18, s16, 1
    s_lshl_b32 s18, s18, 3
    s_and_b32 s19, s17, 7
    s_add_u32 s18, s18, s19          ; s18 = rb
    s_lshr_b32 s19, s16, 1
    s_lshl_b32 s19, s19, 2
    s_lshr_b32 s20, s17, 3
    s_add_u32 s19, s19, s20          ; s19 = cb
    s_mov_b32 s4, s32
    s_mov_b32 s5, s33
    s_mov_b32 s6, 0x400000
    s_mov_b32 s7, 0x00020000
    s_mov_b32 s8, s34
    s_mov_b32 s9, s35
    s_mov_b32 s10, 0x600000
    s_mov_b32 s11, 0x00020000
    s_mov_b32 s12, s36
    s_mov_b32 s13, s37
    s_mov_b32 s14, 0x10000000
    s_mov_b32 s15, 0x00020000
    s_and_b32 s23, s22, 1            ; rh
    s_lshr_b32 s24, s22, 1           ; hs
    s_lshl_b32 s20, s18, 7
    s_lshl_b32 s21, s22, 5
    s_add_u32 s20, s20, s21
    v_lshrrev_b32 v2, 2, v1
    v_add_u32 v2, s20, v2
    v_lshlrev_b32 v2, 11, v2
    v_and_b32 v3, 3, v1
    v_lshrrev_b32 v4, 4, v1
    v_and_b32 v4, 3, v4
    v_xor_b32 v3, v3, v4
    v_lshlrev_b32 v3, 4, v3
    v_add_u32 v2, v2, v3
    s_lshl_b32 s20, s22, 3
    v_lshrrev_b32 v3, 3, v1
    v_add_u32 v3, s20, v3
    v_mul_u32_u24 v3, 6144, v3
    s_lshl_b32 s20, s19, 7
    v_add_u32 v3, s20, v3
    v_and_b32 v4, 7, v1
    v_lshrrev_b32 v5, 4, v1
    v_and_b32 v5, 1, v5
    v_lshlrev_b32 v5, 2, v5
    v_xor_b32 v4, v4, v5
    v_lshlrev_b32 v4, 4, v4
    v_add_u32 v3, v3, v4
    s_lshl_b32 s25, s22, 11          ; sMA = 2048*w
    s_lshl_b32 s26, s22, 10
    s_add_u32 s26, s26, 8192         ; sMB = 8192+1024*w
    s_mov_b32 s27, 0                 ; sKA
    s_mov_b32 s28, 0                 ; sKB
    """)
    def dma(slot):
        o = slot * SLOT
        return [
            f"s_add_u32 m0, s25, {o}\ns_add_u32 s29, s27, 32768\nbuffer_load_dwordx4 v2, s[4:7], s27 offen lds",
            f"s_add_u32 m0, s25, {o+1024}\ns_add_u32 s27, s27, 64\nbuffer_load_dwordx4 v2, s[4:7], s29 offen lds",
            f"s_add_u32 m0, s26, {o}\ns_add_u32 s29, s28, 2048\nbuffer_load_dwordx4 v3, s[8:11], s28 offen lds",
            f"s_add_u32 m0, s26, {o+4096}\ns_add_u32 s30, s28, 4096\nbuffer_load_dwordx4 v3, s[8:11], s29 offen lds",
            f"s_add_u32 m0, s26, {o+8192}\ns_add_u32 s28, s28, 196608\nbuffer_load_dwordx4 v3, s[8:11], s30 offen lds",
        ]
    for st in range(3):
        for d in dma(st): a(d)
    a(f"""
    v_and_b32 v10, 31, v1            ; r
    v_lshrrev_b32 v11, 5, v1         ; kg (A)
    s_lshl_b32 s20, s23, 6
    v_add_u32 v12, s20, v10
    v_lshlrev_b32 v12, 6, v12        ; (64rh + r)*64
    v_lshrrev_b32 v13, 2, v10
    v_and_b32 v13, 3, v13            ; (r>>2)&3
    v_xor_b32 v14, v11, v13
    v_lshlrev_b32 v14, 4, v14
    v_add_u32 v4, v12, v14
    v_xor_b32 v5, 32, v4
    v_add_u32 v6, 40960, v4
    v_add_u32 v7, 40960, v5
    v_lshrrev_b32 v10, 5, v1         ; kg
    v_lshlrev_b32 v10, 3, v10
    v_and_b32 v11, 15, v1
    v_lshrrev_b32 v11, 2, v11        ; r4
    v_add_u32 v10, v10, v11
    v_lshlrev_b32 v10, 7, v10        ; (8kg+r4)*128
    v_lshrrev_b32 v12, 4, v1
    v_and_b32 v12, 1, v12
    v_lshlrev_b32 v12, 1, v12        ; 2ch
    v_and_b32 v13, 3, v1
    v_lshrrev_b32 v14, 1, v13        ; c>>1
    v_add_u32 v12, v12, v14
    s_lshl_b32 s20, s24, 2
    v_add_u32 v12, s20, v12          ; 4hs+2ch+(c>>1)
    v_lshrrev_b32 v11, 1, v11
    v_and_b32 v11, 1, v11
    v_lshlrev_b32 v11, 2, v11
    v_xor_b32 v12, v12, v11
    v_lshlrev_b32 v12, 4, v12
    v_add_u32 v10, v10, v12
    v_and_b32 v13, 1, v13
    v_lshlrev_b32 v13, 3, v13
    v_add_u32 v10, v10, v13
    v_add_u32 v8, 8192, v10
    v_add_u32 v9, 40960, v8
    """)
    for i in range(96): a(f"v_mov_b32 v{ACC+i}, 0")

    def reads(F, slot, ks):
        hi = slot >= 2
        so = (slot - (2 if hi else 0)) * SLOT
        ra = (6 if hi else 4) + ks
        rb = 9 if hi else 8
        out = [f"ds_read_b128 v[{F}:{F+3}], v{ra} offset:{so}"]
        for s in range(3):
            for h in range(2):
                off = so + s * 4096 + (16 * ks + 4 * h) * 128
                out.append(f"ds_read_b64_tr_b16 v[{F+8+4*s+2*h}:{F+8+4*s+2*h+1}], v{rb} offset:{off}")
        out.append(f"ds_read_b128 v[{F+4}:{F+7}], v{ra} offset:{so+2048}")
        return out
    def mfmas(F):
        out = []
        for mb in range(2):
            A = f"v[{F+4*mb}:{F+4*mb+3}]"
            for j in range(3):
                B = f"v[{F+8+4*j}:{F+8+4*j+3}]"
                c = ACC + 16 * (3 * mb + j)
                C = f"v[{c}:{c+15}]"
                if j == 0: out.append(f"v_mfma_f32_32x32x16_bf16 {C}, {B}, {A}, {C}")
                else: out.append(f"v_mfma_f32_32x32x16_bf16 {C}, {A}, {B}, {C}")
        return out
    def interleave(ms, others, per):
        idx = 0
        for k, m in enumerate(ms):
            a(m)
            for _ in range(per[k]):
                if idx < len(others):
                    a(others[idx]); idx += 1
        while idx < len(others):
            a(others[idx]); idx += 1

    a("s_waitcnt vmcnt(10)\ns_barrier")
    for r in reads(F0, 0, 0): a(r)

    def iteration(i, slot, do_dma, vm, last):
        if vm is not None:
            a(f"s_waitcnt vmcnt({vm})")
        a("s_waitcnt lgkmcnt(0)")
        if vm is not None:
            a("s_barrier")
        oth = reads(F1, slot, 1)
        if do_dma:
            d = dma((slot + 3) % 4)
            interleave(mfmas(F0), oth + d, [3, 3, 2, 2, 2, 1])
        else:
            interleave(mfmas(F0), oth, [3, 3, 2, 0, 0, 0])
        a("s_waitcnt lgkmcnt(0)")
        if not last:
            interleave(mfmas(F1), reads(F0, (slot + 1) % 4, 0), [3, 3, 2, 0, 0, 0])
        else:
            interleave(mfmas(F1), [], [0] * 6)

    a("s_mov_b32 s31, 0")
    a.label("L_g1_loop")
    for u in range(4):
        iteration(u, u, True, 5, False)
    a("s_add_u32 s31, s31, 1\ns_cmp_lt_u32 s31, 7\ns_cbranch_scc1 L_g1_loop")
    iteration(28, 0, True, 5, False)
    iteration(29, 1, False, 5, False)
    iteration(30, 2, False, 0, False)
    iteration(31, 3, False, None, True)

    a("""
    s_mov_b32 s40, 0x3fb8aa3b
    s_mov_b32 s41, 0x3fb8aa3b
    s_mov_b32 s42, 0x358637bd
    s_mov_b32 s43, 0x358637bd
    s_lshl_b32 s44, s19, 1
    s_add_u32 s44, s44, s24
    v_lshlrev_b32 v10, 4, v1         ; lane*16
    v_mov_b32 v12, 0x3f803f80
    v_mov_b32 v13, 0x3f803f80
    v_mov_b32 v14, 0x3f803f80
    v_mov_b32 v15, 0x3f803f80
    """)
    T = 152
    PK = 160
    KV = 184
    ZA = 200
    def phi(src, dst):
        for p in range(8):
            x = src + 2 * p
            t = T + 4 * (p % 2)
            a(f"""
            v_pk_mul_f32 v[{t}:{t+1}], v[{x}:{x+1}], s[40:41]
            v_max_f32 v{t+2}, 0, v{x}
            v_max_f32 v{t+3}, 0, v{x+1}
            v_exp_f32_e64 v{t}, v{t} clamp
            v_exp_f32_e64 v{t+1}, v{t+1} clamp
            v_pk_add_f32 v[{t+2}:{t+3}], v[{t+2}:{t+3}], s[42:43]
            v_pk_add_f32 v[{t}:{t+1}], v[{t}:{t+1}], v[{t+2}:{t+3}]
            v_cvt_pk_bf16_f32 v{dst+p}, v{t}, v{t+1}
            """)
    for mb in range(2):
        q, k, v = (ACC + 16 * (3 * mb + j) for j in range(3))
        phi(k, PK)
        for p in range(8):
            a(f"v_cvt_pk_bf16_f32 v{PK+8+p}, v{v+2*p}, v{v+2*p+1}")
        for t in range(2):
            c = "0" if (mb == 0 and t == 0) else None
            Ckv = f"v[{KV}:{KV+15}]"; Cz = f"v[{ZA}:{ZA+15}]"
            a(f"v_mfma_f32_32x32x16_bf16 {Ckv}, v[{PK+4*t}:{PK+4*t+3}], v[{PK+8+4*t}:{PK+8+4*t+3}], {c or Ckv}")
            a(f"v_mfma_f32_32x32x16_bf16 {Cz}, v[{PK+4*t}:{PK+4*t+3}], v[12:15], {c or Cz}")
        phi(q, PK + 16)
        a(f"""
        s_lshl_b32 s45, s18, 2
        s_lshl_b32 s46, s23, 1
        s_add_u32 s45, s45, s46
        s_add_u32 s45, s45, {mb}
        s_lshl_b32 s45, s45, 5
        s_add_u32 s45, s45, s44
        s_lshl_b32 s45, s45, 11
        s_add_u32 s45, s45, {WS_PQ}
        buffer_store_dwordx4 v[{PK+16}:{PK+19}], v10, s[12:15], s45 offen
        buffer_store_dwordx4 v[{PK+20}:{PK+23}], v10, s[12:15], s45 offen offset:1024
        """)
    a("s_barrier")
    a(f"""
    s_lshl_b32 s45, s24, 13
    v_add_u32 v11, s45, v10
    s_cmp_eq_u32 s23, 0
    s_cbranch_scc1 L_g1_red_wait
    """)
    for j in range(4):
        a(f"ds_write_b128 v11, v[{KV+4*j}:{KV+4*j+3}] offset:{1024*j}")
    for j in range(4):
        a(f"ds_write_b128 v11, v[{ZA+4*j}:{ZA+4*j+3}] offset:{4096+1024*j}")
    a("s_waitcnt lgkmcnt(0)\ns_barrier\ns_endpgm")
    a.label("L_g1_red_wait")
    a("s_barrier")
    for j in range(8):
        a(f"ds_read_b128 v[{ACC+4*j}:{ACC+4*j+3}], v11 offset:{1024*j}")
    a("s_waitcnt lgkmcnt(0)")
    for j in range(16):
        a(f"v_pk_add_f32 v[{KV+2*j}:{KV+2*j+1}], v[{KV+2*j}:{KV+2*j+1}], v[{ACC+2*j}:{ACC+2*j+1}]")
    a(f"""
    s_lshl_b32 s45, s44, 4
    s_add_u32 s45, s45, s18          ; head*16+rb
    s_lshl_b32 s46, s45, 12
    s_add_u32 s46, s46, {WS_KVP}
    s_lshl_b32 s47, s45, 7
    s_add_u32 s47, s47, {WS_ZP}
    """)
    for j in range(4):
        a(f"buffer_store_dwordx4 v[{KV+4*j}:{KV+4*j+3}], v10, s[12:15], s46 offen offset:{1024*j}")
    a("""
    v_and_b32 v11, 31, v1
    v_lshlrev_b32 v12, 1, v1
    v_cmp_eq_u32 vcc, 0, v11
    s_and_saveexec_b64 s[48:49], vcc
    """)
    for j in range(4):
        a(f"buffer_store_dwordx4 v[{ZA+4*j}:{ZA+4*j+3}], v12, s[12:15], s47 offen offset:{16*j}")
    a("s_endpgm")
```

```python
from asmlib import Asm
from layout import *

CS = 4288
KP = 4 * CS
WR = KP + 4608

def gen(a: Asm):
    a(f"""
    s_cmp_ge_u32 s2, 256
    s_cbranch_scc1 L_k2_end
    s_load_dwordx2 s[36:37], s[0:1], 96      ; ws
    s_load_dwordx2 s[38:39], s[0:1], 72      ; D_skip
    v_and_b32 v1, 63, v0
    v_lshrrev_b32 v2, 6, v0
    s_nop 0
    v_readfirstlane_b32 s22, v2
    s_waitcnt lgkmcnt(0)
    s_mov_b32 s12, s36
    s_mov_b32 s13, s37
    s_mov_b32 s14, 0x10000000
    s_mov_b32 s15, 0x00020000
    s_cmp_eq_u32 s22, 4
    s_cbranch_scc1 L_k2_otask
    """)
    conv(a)
    a.label("L_k2_otask")
    otask(a)
    a.label("L_k2_end")
    a("s_endpgm")
    return dict(vgpr=192, block=320, lds=4 * WR)

def conv(a):
    ACC = 16; S0 = 48; S1 = 120
    a(f"""
    s_lshl_b32 s23, s2, 2
    s_add_u32 s23, s23, s22          ; channel d
    s_mul_i32 s26, s22, {WR}
    s_lshl_b32 s24, s23, 12          ; d*4096
    s_add_u32 s4, s36, s24
    s_addc_u32 s5, s37, 0
    s_add_u32 s4, s4, {WS_UT}
    s_addc_u32 s5, s5, 0
    s_mov_b32 s6, 4096
    s_mov_b32 s7, 0x00020000
    v_lshlrev_b32 v2, 4, v1          ; lane*16
    """)
    for it in range(4):
        b = S0 + 12 * it
        a(f"""
        buffer_load_dwordx4 v[{b}:{b+3}], v2, s[4:7], 0 offen offset:{1024*it}
        buffer_load_dwordx4 v[{b+4}:{b+7}], v2, s[4:7], 0 offen offset:{1024*it+4}
        buffer_load_dwordx2 v[{b+8}:{b+9}], v2, s[4:7], 0 offen offset:{1024*it+16}
        """)
    a(f"""
    s_add_u32 s27, s24, {WS_KT}
    s_add_u32 s28, s26, {KP+512}
    """)
    for i in range(4):
        a(f"""
        s_add_u32 m0, s28, {1024*i}
        s_add_u32 s29, s27, {1024*i}
        buffer_load_dwordx4 v2, s[12:15], s29 offen lds
        """)
    a(f"""
    s_mov_b32 s8, s38
    s_mov_b32 s9, s39
    s_mov_b32 s10, 2048
    s_mov_b32 s11, 0x00020000
    s_lshl_b32 s25, s23, 1
    v_mov_b32 v3, s25
    buffer_load_ushort v14, v3, s[8:11], 0 offen
    v_mov_b32 v4, 0
    v_mov_b32 v5, 0
    v_mov_b32 v6, 0
    v_mov_b32 v7, 0
    v_lshlrev_b32 v3, 3, v1
    v_add_u32 v3, s26, v3
    ds_write_b64 v3, v[4:5] offset:{KP}
    v_and_b32 v3, 31, v1
    v_lshrrev_b32 v8, 3, v3          ; s
    v_and_b32 v3, 7, v3              ; j
    v_add_u32 v9, 256, v3
    v_cmp_gt_u32 vcc, 2, v3
    v_cndmask_b32 v3, v9, v3, vcc
    v_lshlrev_b32 v3, 4, v3
    v_mul_u32_u24 v8, {CS}, v8
    v_add3_u32 v3, v3, v8, s26
    ds_write_b128 v3, v[4:7]
    v_add_u32 v3, s26, v2
    """)
    E = 100
    for it in range(4):
        b = S0 + 12 * it
        e = E + 8 * (it % 2)
        a(f"s_waitcnt vmcnt({17 - 3*(it+1)})")
        d = [b, b + 1, b + 2, b + 3, b + 8, b + 9]
        for k in range(4):
            a(f"v_alignbyte_b32 v{e+k}, v{d[k+1]}, v{d[k]}, 2")
        for k in range(4):
            a(f"v_alignbyte_b32 v{e+4+k}, v{d[k+2]}, v{d[k+1]}, 2")
        o = 32 + 1024 * it
        a(f"""
        ds_write_b128 v3, v[{b}:{b+3}] offset:{o}
        ds_write_b128 v3, v[{e}:{e+3}] offset:{CS+o}
        ds_write_b128 v3, v[{b+4}:{b+7}] offset:{2*CS+o}
        ds_write_b128 v3, v[{e+4}:{e+7}] offset:{3*CS+o}
        """)
    a(f"""
    v_and_b32 v4, 15, v1             ; b / a
    v_lshrrev_b32 v5, 4, v1          ; kg / g
    v_sub_u32 v6, 3, v4
    v_and_b32 v6, 3, v6              ; s
    v_mul_u32_u24 v6, {CS}, v6
    v_lshrrev_b32 v7, 2, v4
    v_lshlrev_b32 v7, 3, v7          ; 2*4*(b>>2)
    v_lshlrev_b32 v8, 4, v5          ; 2*8*kg
    v_add_u32 v6, v6, v8
    v_sub_u32 v6, v6, v7
    v_add_u32 v6, 24, v6
    v_add_u32 v6, s26, v6            ; A base
    v_lshlrev_b32 v7, 5, v4
    v_add3_u32 v7, v7, v8, s26
    v_add_u32 v7, {KP}, v7           ; B base
    """)
    for i in range(32): a(f"v_mov_b32 v{ACC+i}, 0")
    a("s_waitcnt vmcnt(0) lgkmcnt(0)")
    def reads(S, rho):
        out = []
        ii = range(9) if rho == 0 else range(8)
        ww = range(-1, 8) if rho == 0 else range(8)
        ra, rb = [], []
        for i in ii:
            q = rho + 8 * i
            off = 64 * (64 - q)
            ra.append([f"ds_read_b64 v[{S+4*i}:{S+4*i+1}], v6 offset:{off}", f"ds_read_b64 v[{S+4*i+2}:{S+4*i+3}], v6 offset:{off+8}"])
        for w in ww:
            r = 8 * w - rho
            rb.append([f"ds_read_b128 v[{S+36+4*(w+1)}:{S+36+4*(w+1)+3}], v7 offset:{64*(r+8)}"])
        for x, y in zip(ra, rb):
            out += y + x
        return out
    def mfmas(S, rho):
        out = []
        ii = range(9) if rho == 0 else range(8)
        ww = range(-1, 8) if rho == 0 else range(8)
        for i in ii:
            for w in ww:
                t = i + w
                if 0 <= t <= 7:
                    C = f"v[{ACC+4*t}:{ACC+4*t+3}]"
                    out.append(f"v_mfma_f32_16x16x32_bf16 {C}, v[{S+4*i}:{S+4*i+3}], v[{S+36+4*(w+1)}:{S+36+4*(w+1)+3}], {C}")
        return out
    for r in reads(S0, 0): a(r)
    for rho in range(8):
        S = S0 if rho % 2 == 0 else S1
        Sn = S1 if rho % 2 == 0 else S0
        a("s_waitcnt lgkmcnt(0)")
        ms = mfmas(S, rho)
        rd = reads(Sn, rho + 1) if rho < 7 else []
        k = 0
        for m in ms:
            a(m)
            if k < len(rd): a(rd[k]); k += 1
        while k < len(rd): a(rd[k]); k += 1
    a(f"""
    v_lshlrev_b32 v8, 5, v4          ; 32a
    v_lshlrev_b32 v9, 3, v5          ; 8g
    v_add_u32 v8, v8, v9
    v_sub_u32 v9, {2*(2060-1792)}, v8
    v_add_u32 v9, s26, v9
    v_lshlrev_b32 v14, 16, v14
    v_mov_b32 v15, v14
    s_add_u32 s27, s24, {WS_YT}
    s_mov_b32 s30, 0xffff0000
    """)
    U = 48
    for t in range(8):
        a(f"ds_read_b64 v[{U+2*t}:{U+2*t+1}], v9 offset:{512*(7-t)}")
    a("s_waitcnt lgkmcnt(0)")
    for t in range(8):
        T = 64 + 16 * (t % 4)
        y = ACC + 4 * t
        u0, u1 = U + 2 * t, U + 2 * t + 1
        a(f"""
        v_and_b32 v{T}, s30, v{u1}
        v_lshlrev_b32 v{T+1}, 16, v{u1}
        v_and_b32 v{T+2}, s30, v{u0}
        v_lshlrev_b32 v{T+3}, 16, v{u0}
        v_cvt_pk_bf16_f32 v{T+8}, v{y}, v{y+1}
        v_cvt_pk_bf16_f32 v{T+9}, v{y+2}, v{y+3}
        v_pk_mul_f32 v[{T}:{T+1}], v[{T}:{T+1}], v[14:15]
        v_pk_mul_f32 v[{T+2}:{T+3}], v[{T+2}:{T+3}], v[14:15]
        v_lshlrev_b32 v{T+4}, 16, v{T+8}
        v_and_b32 v{T+5}, s30, v{T+8}
        v_lshlrev_b32 v{T+6}, 16, v{T+9}
        v_and_b32 v{T+7}, s30, v{T+9}
        v_cvt_pk_bf16_f32 v{T+8}, v{T}, v{T+1}
        v_cvt_pk_bf16_f32 v{T+9}, v{T+2}, v{T+3}
        v_lshlrev_b32 v{T}, 16, v{T+8}
        v_and_b32 v{T+1}, s30, v{T+8}
        v_lshlrev_b32 v{T+2}, 16, v{T+9}
        v_and_b32 v{T+3}, s30, v{T+9}
        v_pk_add_f32 v[{T}:{T+1}], v[{T}:{T+1}], v[{T+4}:{T+5}]
        v_pk_add_f32 v[{T+2}:{T+3}], v[{T+2}:{T+3}], v[{T+6}:{T+7}]
        v_cvt_pk_bf16_f32 v{T+10}, v{T}, v{T+1}
        v_cvt_pk_bf16_f32 v{T+11}, v{T+2}, v{T+3}
        buffer_store_dwordx2 v[{T+10}:{T+11}], v8, s[12:15], s27 offen offset:{512*t}
        """)
    a("s_endpgm")

def otask(a):
    KV = 16; ZA = 32
    B0 = 48; B1 = 80
    PQ = 112
    a(f"""
    s_and_b32 s23, s2, 31            ; head
    s_lshr_b32 s24, s2, 5
    v_lshlrev_b32 v2, 4, v1          ; lane*16
    v_lshrrev_b32 v3, 5, v1
    v_lshlrev_b32 v3, 6, v3          ; kg*64
    s_lshl_b32 s25, s23, 16
    s_add_u32 s25, s25, {WS_KVP}     ; head*16*4096
    s_lshl_b32 s26, s23, 11
    s_add_u32 s26, s26, {WS_ZP}      ; head*16*128
    s_lshl_b32 s27, s24, 8
    s_add_u32 s27, s27, s23
    s_lshl_b32 s27, s27, 11
    """)
    def ldp(B):
        for j in range(4):
            a(f"buffer_load_dwordx4 v[{B+4*j}:{B+4*j+3}], v2, s[12:15], s25 offen offset:{1024*j}")
        for j in range(4):
            a(f"buffer_load_dwordx4 v[{B+16+4*j}:{B+16+4*j+3}], v3, s[12:15], s26 offen offset:{16*j}")
        a("s_add_u32 s25, s25, 4096\ns_add_u32 s26, s26, 128")
    ldp(KV)
    ldp(B0)
    ldp(B1)
    for p in range(1, 16):
        B = B0 if p % 2 == 1 else B1
        last = (p + 2 > 15)
        a(f"s_waitcnt vmcnt({8 if p < 15 else 0})")
        for j in range(16):
            a(f"v_pk_add_f32 v[{KV+2*j}:{KV+2*j+1}], v[{KV+2*j}:{KV+2*j+1}], v[{B+2*j}:{B+2*j+1}]")
        if not last: ldp(B)
    a(f"s_add_u32 s28, s27, {WS_PQ}\ns_add_u32 s29, s27, {WS_O}")
    for r in range(8):
        a(f"""
        buffer_load_dwordx4 v[{PQ+8*r}:{PQ+8*r+3}], v2, s[12:15], s28 offen
        buffer_load_dwordx4 v[{PQ+8*r+4}:{PQ+8*r+7}], v2, s[12:15], s28 offen offset:1024
        s_add_u32 s28, s28, 65536
        """)
    KA = 48
    for j in range(16):
        a(f"v_cvt_pk_bf16_f32 v{KA+j}, v{KV+2*j}, v{KV+2*j+1}")
    a("s_mov_b32 s30, 0xffff0000\ns_mov_b32 s31, 0x358637bd")
    NUM = 64; DEN = 80; T = 96
    for r in range(8):
        p = PQ + 8 * r
        a(f"s_waitcnt vmcnt({16 - 2*(r+1) + 2*r})")
        N = f"v[{NUM}:{NUM+15}]"; Dn = f"v[{DEN}:{DEN+15}]"
        a(f"""
        v_mfma_f32_32x32x16_bf16 {Dn}, v[{KA+8}:{KA+11}], v[{p}:{p+3}], 0
        v_mfma_f32_32x32x16_bf16 {N}, v[{KA}:{KA+3}], v[{p}:{p+3}], 0
        v_mfma_f32_32x32x16_bf16 {Dn}, v[{KA+12}:{KA+15}], v[{p+4}:{p+7}], {Dn}
        v_mfma_f32_32x32x16_bf16 {N}, v[{KA+4}:{KA+7}], v[{p+4}:{p+7}], {N}
        v_cvt_pk_bf16_f32 v4, v{DEN}, v{DEN}
        v_lshlrev_b32 v4, 16, v4
        v_add_f32 v4, s31, v4
        v_cvt_pk_bf16_f32 v4, v4, v4
        v_lshlrev_b32 v4, 16, v4
        v_rcp_f32 v4, v4
        """)
        a("v_mov_b32 v5, v4")
        for j in range(8):
            a(f"v_cvt_pk_bf16_f32 v{T+j}, v{NUM+2*j}, v{NUM+2*j+1}")
        for j in range(8):
            a(f"v_lshlrev_b32 v{NUM+2*j}, 16, v{T+j}\nv_and_b32 v{NUM+2*j+1}, s30, v{T+j}")
        for j in range(8):
            a(f"v_pk_mul_f32 v[{NUM+2*j}:{NUM+2*j+1}], v[{NUM+2*j}:{NUM+2*j+1}], v[4:5]")
        for j in range(8):
            a(f"v_cvt_pk_bf16_f32 v{p+j}, v{NUM+2*j}, v{NUM+2*j+1}")
        a(f"""
        buffer_store_dwordx4 v[{p}:{p+3}], v2, s[12:15], s29 offen
        buffer_store_dwordx4 v[{p+4}:{p+7}], v2, s[12:15], s29 offen offset:1024
        s_add_u32 s29, s29, 65536
        """)
    a("s_endpgm")
```

```python
from asmlib import Asm
from layout import *

TB = 131072
TP = 144

class VM:
    def __init__(self, a): self.a = a; self.q = []
    def issue(self, tag, text): self.a(text); self.q.append(tag)
    def wait(self, tag):
        last = max(i for i, t in enumerate(self.q) if t == tag)
        n = len(self.q) - 1 - last
        assert n <= 63
        self.a(f"s_waitcnt vmcnt({n})")

def gen(a: Asm):
    vm = VM(a)
    a(f"""
    s_cmp_ge_u32 s2, 256
    s_cbranch_scc1 L_k3_end
    s_load_dwordx2 s[36:37], s[0:1], 96      ; ws
    s_load_dwordx2 s[38:39], s[0:1], 16      ; wo
    s_load_dwordx2 s[40:41], s[0:1], 80      ; out
    v_and_b32 v1, 63, v0
    v_lshrrev_b32 v2, 6, v0
    s_nop 0
    v_readfirstlane_b32 s22, v2
    s_and_b32 s16, s2, 7
    s_lshr_b32 s17, s2, 3
    s_and_b32 s18, s16, 3
    s_lshl_b32 s18, s18, 2
    s_and_b32 s19, s17, 3
    s_add_u32 s18, s18, s19          ; rb
    s_lshr_b32 s19, s16, 2
    s_lshl_b32 s19, s19, 3
    s_lshr_b32 s20, s17, 2
    s_add_u32 s19, s19, s20          ; cb
    s_waitcnt lgkmcnt(0)
    s_mov_b32 s4, s38
    s_mov_b32 s5, s39
    s_mov_b32 s6, 0x200000
    s_mov_b32 s7, 0x00020000
    s_mov_b32 s8, s40
    s_mov_b32 s9, s41
    s_mov_b32 s10, 0x800000
    s_mov_b32 s11, 0x00020000
    s_mov_b32 s12, s36
    s_mov_b32 s13, s37
    s_mov_b32 s14, 0x10000000
    s_mov_b32 s15, 0x00020000
    s_lshr_b32 s23, s2, 5
    s_lshl_b32 s23, s23, 7           ; d0
    s_and_b32 s24, s2, 31
    s_lshl_b32 s24, s24, 6           ; l0
    v_lshrrev_b32 v2, 3, v0          ; row 0..31
    v_and_b32 v3, 7, v0
    v_lshlrev_b32 v3, 4, v3
    v_add_u32 v4, s23, v2
    v_lshlrev_b32 v4, 12, v4
    v_add_u32 v4, v4, v3
    s_lshl_b32 s25, s24, 1
    s_add_u32 s25, s25, {WS_YT}
    v_mul_u32_u24 v5, {TP}, v2
    v_add_u32 v5, v5, v3
    v_add_u32 v5, {TB}, v5
    """)
    YR = 16
    for i in range(4):
        vm.issue("Y", f"s_add_u32 s26, s25, {i*32*4096}\nbuffer_load_dwordx4 v[{YR+4*i}:{YR+4*i+3}], v4, s[12:15], s26 offen")
    a(f"""
    s_lshl_b32 s26, s22, 5
    v_lshrrev_b32 v6, 3, v1
    v_add_u32 v6, s26, v6
    v_lshlrev_b32 v6, 11, v6
    s_lshl_b32 s26, s19, 7
    v_add_u32 v6, s26, v6
    v_and_b32 v8, 7, v1
    v_lshrrev_b32 v9, 4, v1
    v_and_b32 v9, 1, v9
    v_lshlrev_b32 v9, 2, v9
    v_xor_b32 v8, v8, v9
    v_lshlrev_b32 v8, 4, v8
    v_add_u32 v6, v6, v8
    v_lshlrev_b32 v7, 4, v1
    s_lshl_b32 s27, s22, 12          ; m0 base: 32w*128
    s_lshl_b32 s28, s18, 2
    s_add_u32 s28, s28, s22
    s_lshl_b32 s28, s28, 16
    s_add_u32 s28, s28, {WS_O}
    """)
    AB = [64, 96, 128]
    def D(c):
        for jj in range(4):
            vm.issue(f"D{c}", f"s_add_u32 m0, s27, {(128*c+8*jj)*128}\ns_mov_b32 s29, {(128*c+8*jj)*2048}\nbuffer_load_dwordx4 v6, s[4:7], s29 offen lds")
    def Aload(c):
        B = AB[c % 3]
        for n in range(8):
            off = (8 * c + n) * 1024
            vm.issue(f"A{c}", f"s_add_u32 s29, s28, {off}\nbuffer_load_dwordx4 v[{B+4*n}:{B+4*n+3}], v7, s[12:15], s29 offen")
    D(0); Aload(0); D(1); Aload(1); D(2)
    vm.wait("Y")
    for i in range(4):
        a(f"ds_write_b128 v5, v[{YR+4*i}:{YR+4*i+3}] offset:{32*i*TP}")
    a(f"""
    v_and_b32 v2, 15, v1             ; i
    v_lshrrev_b32 v3, 2, v2          ; r
    v_and_b32 v4, 3, v2              ; c
    v_lshrrev_b32 v5, 4, v1          ; g4
    v_lshlrev_b32 v8, 3, v5
    v_add_u32 v8, v8, v3             ; 8 g4 + r
    s_lshl_b32 s26, s22, 5
    v_add_u32 v8, s26, v8            ; + 32 w
    v_mul_u32_u24 v8, {TP}, v8
    v_lshlrev_b32 v4, 3, v4
    v_add_u32 v8, v8, v4
    v_add_u32 v8, {TB}, v8
    s_waitcnt lgkmcnt(0)
    s_barrier
    """)
    for cg in range(4):
        for h in range(2):
            a(f"ds_read_b64_tr_b16 v[{YR+4*cg+2*h}:{YR+4*cg+2*h+1}], v8 offset:{4*h*TP + 32*cg}")
    a(f"""
    v_add_u32 v2, s24, v2
    v_lshlrev_b32 v2, 12, v2         ; (l0+i)*4096
    v_lshlrev_b32 v5, 4, v5
    v_add_u32 v2, v2, v5
    s_lshl_b32 s26, s22, 6
    s_lshl_b32 s29, s23, 1
    s_add_u32 s26, s26, s29
    s_add_u32 s26, s26, 2048         ; (1024 + d0 + 32w)*2
    s_waitcnt lgkmcnt(0)
    """)
    for cg in range(4):
        vm.issue("S", f"s_add_u32 s29, s26, {cg*16*4096}\nbuffer_store_dwordx4 v[{YR+4*cg}:{YR+4*cg+3}], v2, s[8:11], s29 offen")
    a(f"""
    v_lshrrev_b32 v10, 5, v1         ; kg
    v_lshlrev_b32 v10, 2, v10
    v_and_b32 v11, 15, v1
    v_lshrrev_b32 v11, 2, v11        ; r4
    v_add_u32 v10, v10, v11
    v_lshlrev_b32 v10, 7, v10        ; (4kg+r4)*128
    v_lshrrev_b32 v12, 4, v1
    v_and_b32 v12, 1, v12
    v_lshlrev_b32 v12, 1, v12        ; 2ch
    v_and_b32 v13, 3, v1
    v_lshrrev_b32 v14, 1, v13
    v_add_u32 v12, v12, v14
    v_lshrrev_b32 v11, 1, v11
    v_and_b32 v11, 1, v11
    v_lshlrev_b32 v11, 2, v11
    v_xor_b32 v12, v12, v11
    v_lshlrev_b32 v12, 4, v12
    v_add_u32 v10, v10, v12
    v_and_b32 v13, 1, v13
    v_lshlrev_b32 v13, 3, v13
    v_add_u32 v10, v10, v13
    v_xor_b32 v11, 64, v10
    v_add_u32 v12, 16384, v10
    v_add_u32 v13, 16384, v11
    """)
    ACC = 32
    BB = 160
    def breads(n):
        c = n >> 3
        ra = (10, 11) if c % 2 == 0 else (12, 13)
        R = BB + 8 * (n % 4)
        out = []
        for ct in range(2):
            for hh in range(2):
                off = ((n & 7) * 16 + 8 * hh) * 128
                out.append(f"ds_read_b64_tr_b16 v[{R+4*ct+2*hh}:{R+4*ct+2*hh+1}], v{ra[ct]} offset:{off}")
        return out
    vm.wait("A0")
    a("s_barrier")
    for n in range(3):
        for r in breads(n): a(r)
    for n in range(64):
        c = n >> 3
        if n % 8 == 0 and n > 0:
            vm.wait(f"A{c}")
        if n % 8 == 4 and c < 7:
            vm.wait(f"D{c+1}")
            a("s_barrier")
        inflight = min(2, 63 - n) * 4
        a(f"s_waitcnt lgkmcnt({inflight})")
        R = BB + 8 * (n % 4)
        Af = AB[c % 3] + 4 * (n & 7)
        rd = breads(n + 3) if n + 3 < 64 else []
        for ct in range(2):
            C = f"v[{ACC+16*ct}:{ACC+16*ct+15}]"
            a(f"v_mfma_f32_32x32x16_bf16 {C}, v[{R+4*ct}:{R+4*ct+3}], v[{Af}:{Af+3}], {'0' if n == 0 else C}")
            for r in rd[2*ct:2*ct+2]: a(r)
        if n % 8 == 4:
            if c + 2 < 8: Aload(c + 2)
            if c + 3 < 8: D(c + 3)
        if n % 8 == 4 and c + 2 < 8:
            ra = (10, 11) if c % 2 == 0 else (12, 13)
            a(f"v_add_u32 v{ra[0]}, 32768, v{ra[0]}\nv_add_u32 v{ra[1]}, 32768, v{ra[1]}")
    a(f"""
    v_and_b32 v2, 31, v1
    s_lshl_b32 s26, s18, 7
    s_lshl_b32 s29, s22, 5
    s_add_u32 s26, s26, s29
    v_add_u32 v2, s26, v2
    v_lshlrev_b32 v2, 12, v2
    v_lshrrev_b32 v3, 5, v1
    v_lshlrev_b32 v3, 3, v3
    v_add_u32 v2, v2, v3
    s_lshl_b32 s26, s19, 7
    """)
    for j in range(16):
        a(f"v_cvt_pk_bf16_f32 v{64+j}, v{ACC+2*j}, v{ACC+2*j+1}")
    for ct in range(2):
        for g4 in range(4):
            r = 64 + 8 * ct + 2 * g4
            a(f"buffer_store_dwordx2 v[{r}:{r+1}], v2, s[8:11], s26 offen offset:{64*ct+16*g4}")
    a.label("L_k3_end")
    a("s_endpgm")
    return dict(vgpr=192, block=256, lds=TB + 128 * TP)
```

```python
import sys
from asmlib import Asm
from layout import *
import k1_gemm1

HEADER = open("cdna_kernels/" + NAME + ".s.ref").read().split("; Override launch")[0]

def kernel_desc(name, vgpr, sgpr=96):
    return f"""
.section .rodata,"a"
.p2align 6
.amdhsa_kernel {name}
  .amdhsa_next_free_vgpr {vgpr}
  .amdhsa_next_free_sgpr {sgpr}
  .amdhsa_accum_offset {((vgpr+3)//4)*4}
  .amdhsa_group_segment_fixed_size 0
  .amdhsa_kernarg_size 104
  .amdhsa_user_sgpr_count 2
  .amdhsa_user_sgpr_kernarg_segment_ptr 1
  .amdhsa_system_sgpr_workgroup_id_x 1
.end_amdhsa_kernel
"""

def kernel_text(name, body):
    return f"""
.text
.globl {name}
.p2align 8
.type {name},@function
{name}:
{body}
"""

def build(stages=("k1",), out=None):
    launches = []; texts = []; descs = []
    if "k1" in stages or "k1g" in stages:
        a = Asm()
        with_aux = "k1" in stages
        nwg = 512 if with_aux else 256
        a(f"""
        s_cmp_ge_u32 s2, {nwg}
        s_cbranch_scc1 L_k1_end
        s_load_dwordx4 s[32:35], s[0:1], 0
        s_load_dwordx2 s[36:37], s[0:1], 96
        """)
        if with_aux:
            a("s_cmp_ge_u32 s2, 256\ns_cbranch_scc1 L_k1_aux")
        a("s_waitcnt lgkmcnt(0)")
        k1_gemm1.gen_gemm1(a)
        if with_aux:
            import k1_aux
            a.label("L_k1_aux")
            k1_aux.gen_aux(a)
        a.label("L_k1_end")
        a("s_endpgm")
        texts.append(kernel_text("k1_kernel", a.finalize()))
        descs.append(kernel_desc("k1_kernel", 216))
        launches.append(f"; @launch kernel=k1_kernel grid=({nwg},1,1) block=(256,1,1) lds=81920")
    if "k2" in stages:
        import k2
        a = Asm(); info = k2.gen(a)
        texts.append(kernel_text("k2_kernel", a.finalize()))
        descs.append(kernel_desc("k2_kernel", info["vgpr"]))
        launches.append(f"; @launch kernel=k2_kernel grid=(256,1,1) block=({info['block']},1,1) lds={info['lds']}")
    if "k3" in stages:
        import k3
        a = Asm(); info = k3.gen(a)
        texts.append(kernel_text("k3_kernel", a.finalize()))
        descs.append(kernel_desc("k3_kernel", info["vgpr"]))
        launches.append(f"; @launch kernel=k3_kernel grid=(256,1,1) block=({info['block']},1,1) lds={info['lds']}")
    s = HEADER + "\n".join(launches) + '\n.amdgcn_target "amdgcn-amd-amdhsa--gfx950"\n' + "".join(texts) + "".join(descs)
    open(out, "w").write(s)

if __name__ == "__main__":
    stages = sys.argv[1].split(",")
    build(stages, sys.argv[2])
```

```python
from asmlib import Asm
from layout import *
from stamps import Stamps
import struct, math, os

def f2u(x): return struct.unpack("<I", struct.pack("<f", x))[0]
L2E = math.log2(math.e)
L2E_HI = struct.unpack("<f", struct.pack("<I", 0x3fb8aa3b))[0]
L2E_LO = L2E - L2E_HI

AUXW = 6912
TP = 80
BB = 32768
BS = 12288
NPF = int(os.environ.get('NPF', '3'))

def gen(a: Asm):
    st = Stamps(a, 0)
    a(f"""
    s_cmp_ge_u32 s2, 512
    s_cbranch_scc1 L_k1_end
    s_load_dwordx8 s[32:39], s[0:1], 0
    s_load_dwordx8 s[48:55], s[0:1], 32
    s_load_dwordx2 s[56:57], s[0:1], 64      ; log_dt
    s_load_dwordx2 s[58:59], s[0:1], 96      ; ws
    v_and_b32 v1, 63, v0
    v_lshrrev_b32 v2, 6, v0
    s_nop 0
    v_readfirstlane_b32 s22, v2      ; wave 0..3
    s_waitcnt lgkmcnt(0)
    s_mov_b32 s12, s58
    s_mov_b32 s13, s59
    s_mov_b32 s14, 0x10000000
    s_mov_b32 s15, 0x00020000
    """)
    st.stamp()
    a("s_cmp_ge_u32 s2, 256\ns_cbranch_scc1 L_k1_aux")
    sv = st.n
    gemm(a, st)
    st.n = sv
    a.label("L_k1_aux")
    aux(a, st)
    a.label("L_k1_end")
    a("s_endpgm")
    return dict(vgpr=224, block=256, lds=81920, grid=256 if os.environ.get('NOAUX') == '1' else 512)

def aux(a, st):
    a(f"""
    s_sub_u32 s16, s2, 256           ; g
    s_lshl_b32 s25, s16, 2
    s_add_u32 s25, s25, s22          ; d
    s_lshl_b32 s26, s25, 8
    v_lshlrev_b32 v7, 1, v1
    s_mov_b32 s46, 0x40000
    s_mov_b32 s47, 0x00020000
    """)
    for idx, lo in enumerate((48, 50, 52, 54)):
        a(f"""
        s_mov_b32 s44, s{lo}
        s_mov_b32 s45, s{lo+1}
        buffer_load_ushort v{32+2*idx}, v7, s[44:47], s26 offen
        buffer_load_ushort v{33+2*idx}, v7, s[44:47], s26 offen offset:128
        """)
    a(f"""
    s_mov_b32 s44, s56
    s_mov_b32 s45, s57
    s_mov_b32 s46, 2048
    s_lshl_b32 s20, s25, 1
    v_mov_b32 v8, s20
    buffer_load_ushort v40, v8, s[44:47], 0 offen
    s_mov_b32 s44, s38
    s_mov_b32 s45, s39
    s_mov_b32 s46, 0x400000
    s_and_b32 s23, s16, 31
    s_lshl_b32 s23, s23, 6           ; l0
    s_lshr_b32 s24, s16, 5
    s_lshl_b32 s24, s24, 7
    s_lshl_b32 s20, s22, 5
    s_add_u32 s24, s24, s20          ; d0
    v_lshrrev_b32 v2, 2, v1
    v_and_b32 v5, 3, v1
    v_add_u32 v2, s23, v2
    v_lshlrev_b32 v2, 11, v2
    v_lshlrev_b32 v5, 4, v5
    v_add_u32 v2, v2, v5
    s_lshl_b32 s20, s24, 1
    v_add_u32 v2, s20, v2
    s_mov_b32 s20, 32768
    s_mov_b32 s21, 65536
    s_mov_b32 s27, 98304
    buffer_load_dwordx4 v[112:115], v2, s[44:47], 0 offen
    buffer_load_dwordx4 v[116:119], v2, s[44:47], s20 offen
    buffer_load_dwordx4 v[120:123], v2, s[44:47], s21 offen
    buffer_load_dwordx4 v[124:127], v2, s[44:47], s27 offen
    s_mov_b32 s44, s36
    s_mov_b32 s45, s37
    s_mov_b32 s46, 0x200000
    s_lshl_b32 s20, s16, 13
    s_lshl_b32 s21, s22, 11
    s_add_u32 s20, s20, s21
    v_and_b32 v2, 15, v1
    v_lshlrev_b32 v2, 7, v2
    buffer_load_dword v221, v2, s[44:47], s20 offen
    s_mul_i32 s26, s22, {AUXW}
    s_mov_b32 s40, 0x3fb8aa3b
    s_mov_b32 s41, {f2u(L2E_LO)}
    s_mov_b32 s42, {f2u(math.log(2.0))}
    s_mov_b32 s43, {f2u(1.0/(2*math.pi))}
    s_waitcnt vmcnt(5)
    """)
    st.stamp()
    for i in range(9): a(f"v_lshlrev_b32 v{32+i}, 16, v{32+i}")
    def exp_bf16(dst, src, t):
        a(f"""
        v_mul_f32 v{t}, s40, v{src}
        v_fma_f32 v{t+1}, v{src}, s40, -v{t}
        v_fma_f32 v{t+1}, v{src}, s41, v{t+1}
        v_exp_f32 v{t}, v{t}
        v_mul_f32 v{t+1}, s42, v{t+1}
        v_fma_f32 v{t}, v{t}, v{t+1}, v{t}
        v_cvt_pk_bf16_f32 v{t}, v{t}, v{t}
        v_lshlrev_b32 v{dst}, 16, v{t}
        """)
    exp_bf16(40, 40, 56)
    exp_bf16(32, 32, 58)
    exp_bf16(33, 33, 60)
    a(f"""
    v_max_f32_e64 v44, |v36|, |v37|
    v_max3_f32 v44, |v38|, |v39|, v44
    s_nop 1
    v_max_f32_dpp v44, v44, v44 row_ror:1 row_mask:0xf bank_mask:0xf
    s_nop 1
    v_max_f32_dpp v44, v44, v44 row_ror:2 row_mask:0xf bank_mask:0xf
    s_nop 1
    v_max_f32_dpp v44, v44, v44 row_ror:4 row_mask:0xf bank_mask:0xf
    s_nop 1
    v_max_f32_dpp v44, v44, v44 row_ror:8 row_mask:0xf bank_mask:0xf
    s_nop 1
    v_readlane_b32 s32, v44, 0
    v_readlane_b32 s33, v44, 16
    v_readlane_b32 s34, v44, 32
    v_readlane_b32 s35, v44, 48
    s_nop 1
    s_max_u32 s32, s32, s33
    s_max_u32 s34, s34, s35
    s_max_u32 s32, s32, s34
    s_lshr_b32 s32, s32, 23
    s_min_u32 s32, s32, 252
    s_sub_u32 s33, 253, s32
    s_lshl_b32 s33, s33, 23          ; scale
    s_add_u32 s32, s32, 1
    s_lshl_b32 s32, s32, 23
    v_add_f32 v46, v40, v40
    v_mul_f32 v111, s32, v46
    """)
    for h in range(2):
        P = 48 + 4 * h
        a(f"""
        v_mul_f32 v{P}, v{32+h}, v40
        v_mul_f32 v{P+1}, v{34+h}, v40
        v_mul_f32 v{P+2}, s33, v{36+h}
        v_mul_f32 v{P+3}, s33, v{38+h}
        v_mul_f32 v{P}, s40, v{P}
        v_mul_f32 v{P+1}, s43, v{P+1}
        v_sub_f32 v{P}, 0, v{P}
        """)
    a(f"""
    v_lshlrev_b32 v2, 4, v1
    v_add_u32 v2, s26, v2
    ds_write_b128 v2, v[48:51]
    ds_write_b128 v2, v[52:55] offset:1024
    v_and_b32 v3, 15, v1             ; idx
    v_lshrrev_b32 v4, 4, v1          ; kg / g
    v_and_b32 v5, 7, v3
    v_lshrrev_b32 v6, 3, v3
    v_lshl_add_u32 v8, v6, 7, v5
    v_and_b32 v6, 3, v3
    v_lshlrev_b32 v6, 1, v6
    v_lshrrev_b32 v7, 2, v3
    v_lshl_add_u32 v6, v7, 7, v6
    v_add_u32 v6, 256, v6
    v_and_b32 v7, 1, v3
    v_lshlrev_b32 v7, 2, v7
    v_lshrrev_b32 v9, 1, v3
    v_and_b32 v9, 3, v9
    v_lshl_add_u32 v7, v9, 7, v7
    v_add_u32 v7, 512, v7
    v_cmp_gt_u32 vcc, 8, v3
    v_cndmask_b32 v10, v7, v6, vcc
    v_lshlrev_b32 v7, 7, v3
    v_add_u32 v7, 1024, v7
    v_min_u32 v12, 2176, v7
    v_lshlrev_b32 v6, 2, v3
    v_add_u32 v6, s26, v6
    ds_write_b32 v6, v8 offset:6656
    ds_write_b32 v6, v10 offset:6720
    ds_write_b32 v6, v12 offset:6784
    v_cvt_f32_u32 v8, v8
    v_cvt_f32_u32 v10, v10
    v_cvt_f32_u32 v12, v12
    v_mov_b32 v9, v8
    v_mov_b32 v11, v10
    v_mov_b32 v13, v12
    v_lshlrev_b32 v14, 3, v3
    v_cvt_f32_u32 v14, v14
    v_mov_b32 v15, v14
    v_lshlrev_b32 v7, 6, v4
    v_add_u32 v7, s26, v7
    """)
    PR = 16; AH = 64; BH = 88; AC = 96
    M = range(4)
    def evals(pf, TMP):
        for m in M: a(f"v_pk_mul_f32 v[{TMP+4*m}:{TMP+4*m+1}], v[{PR+4*m}:{PR+4*m+1}], v[{pf}:{pf+1}]")
        for m in M: a(f"v_fract_f32 v{TMP+4*m+1}, v{TMP+4*m+1}")
        for m in M: a(f"v_exp_f32 v{TMP+4*m}, v{TMP+4*m}")
        for m in M: a(f"v_cos_f32 v{TMP+4*m+2}, v{TMP+4*m+1}")
        for m in M: a(f"v_sin_f32 v{TMP+4*m+3}, v{TMP+4*m+1}")
        for m in M: a(f"v_pk_mul_f32 v[{TMP+4*m+2}:{TMP+4*m+3}], v[{TMP+4*m+2}:{TMP+4*m+3}], v[{TMP+4*m}:{TMP+4*m+1}] op_sel_hi:[1,0]")
    for i in range(12): a(f"v_mov_b32 v{AC+i}, 0")
    a("s_mov_b32 s21, 0\ns_waitcnt lgkmcnt(0)")
    a.label("L_kg_loop")
    for m in M:
        a(f"ds_read_b128 v[{PR+4*m}:{PR+4*m+3}], v7 offset:{16*m}")
    a("v_add_u32 v7, 256, v7\ns_waitcnt lgkmcnt(0)")
    T0, T1 = 32, 48
    evals(14, T0)
    for m in M: a(f"v_pk_mul_f32 v[{T0+4*m}:{T0+4*m+1}], v[{T0+4*m+2}:{T0+4*m+3}], v[{PR+4*m+2}:{PR+4*m+3}] op_sel_hi:[1,0] neg_hi:[0,1]")
    for m in M: a(f"v_pk_fma_f32 v[{T0+4*m}:{T0+4*m+1}], v[{T0+4*m+2}:{T0+4*m+3}], v[{PR+4*m+2}:{PR+4*m+3}], v[{T0+4*m}:{T0+4*m+1}] op_sel:[1,1,0] op_sel_hi:[0,1,1] neg_lo:[0,1,0] neg_hi:[0,1,0]")
    for m in M: a(f"v_cvt_pk_f16_f32 v{BH+m}, v{T0+4*m}, v{T0+4*m+1}")
    for T in range(3):
        TMP = T1 if T % 2 == 0 else T0
        evals(8 + 2 * T, TMP)
        for m in M: a(f"v_cvt_pk_f16_f32 v{AH+4*T+m}, v{TMP+4*m+2}, v{TMP+4*m+3}")
        C = f"v[{AC+4*T}:{AC+4*T+3}]"
        a(f"v_mfma_f32_16x16x32_f16 {C}, v[{AH+4*T}:{AH+4*T+3}], v[{BH}:{BH+3}], {C}")
    a("s_add_u32 s21, s21, 1\ns_cmp_lt_u32 s21, 8\ns_cbranch_scc1 L_kg_loop")
    st.stamp()
    a(f"""
    v_lshlrev_b32 v6, 4, v4
    v_add_u32 v6, s26, v6
    ds_read_b128 v[16:19], v6 offset:6656
    ds_read_b128 v[20:23], v6 offset:6720
    ds_read_b128 v[24:27], v6 offset:6784
    s_add_u32 s3, s26, 2048
    v_lshlrev_b32 v5, 4, v3
    v_add_u32 v5, s3, v5
    """)
    for i in range(12): a(f"v_mul_f32 v{AC+i}, v111, v{AC+i}")
    a("s_waitcnt lgkmcnt(0)")
    for i in range(12):
        a(f"v_lshl_add_u32 v{16+i}, v{16+i}, 1, v5")
    for i in range(0, 12, 2):
        a(f"v_cvt_pk_bf16_f32 v{32+i}, v{AC+i}, v{AC+i+1}")
    for i in range(0, 12, 2):
        a(f"ds_write_b16 v{16+i}, v{32+i}")
        a(f"ds_write_b16_d16_hi v{16+i+1}, v{32+i}")
    a(f"""
    v_lshlrev_b32 v2, 3, v1
    v_cvt_f32_u32 v2, v2
    v_lshlrev_b32 v3, 4, v1
    s_lshl_b32 s28, s25, 12
    s_add_u32 s28, s28, {WS_KT}
    s_mov_b32 s30, 0xffff0000
    """)
    for i in range(4):
        B = 128 + 16 * i
        for jp in range(4):
            t = B + 4 * jp
            a(f"v_add_f32 v{t}, {float(512*i + 2*jp)!r}, v2\nv_add_f32 v{t+1}, {float(512*i + 2*jp + 1)!r}, v2")
        for jp in range(4):
            t = B + 4 * jp
            a(f"v_cvt_pk_bf16_f32 v{t}, v{t}, v{t+1}")
        for jp in range(4):
            t = B + 4 * jp
            a(f"v_and_b32 v{t+1}, 0xffff0000, v{t}\nv_lshlrev_b32 v{t}, 16, v{t}")
        for jp in range(4):
            t = B + 4 * jp
            a(f"v_cvt_u32_f32 v{t}, v{t}\nv_cvt_u32_f32 v{t+1}, v{t+1}")
        for jp in range(4):
            t = B + 4 * jp
            a(f"v_lshl_add_u32 v{t}, v{t}, 1, s3\nv_lshl_add_u32 v{t+1}, v{t+1}, 1, s3")
    a("s_waitcnt lgkmcnt(0)")
    for i in range(4):
        B = 128 + 16 * i
        o = 32 + 4 * i
        for jp in range(4):
            t = B + 4 * jp
            a(f"ds_read_u16 v{o+jp}, v{t}\nds_read_u16_d16_hi v{o+16+jp}, v{t+1}")
    a("s_waitcnt lgkmcnt(0)")
    for i in range(16):
        a(f"v_and_or_b32 v{32+i}, v{48+i}, s30, v{32+i}")
    for i in range(4):
        a(f"buffer_store_dwordx4 v[{32+4*i}:{35+4*i}], v3, s[12:15], s28 offen offset:{1024*i}")
    st.stamp()
    a(f"""
    v_lshrrev_b32 v2, 2, v1
    v_and_b32 v3, 3, v1
    v_mul_u32_u24 v6, {TP}, v2
    v_lshlrev_b32 v3, 4, v3
    v_add3_u32 v6, v6, v3, s26
    s_waitcnt vmcnt(4)
    ds_write_b128 v6, v[112:115]
    ds_write_b128 v6, v[116:119] offset:{16*TP}
    ds_write_b128 v6, v[120:123] offset:{32*TP}
    ds_write_b128 v6, v[124:127] offset:{48*TP}
    v_and_b32 v2, 15, v1
    v_lshrrev_b32 v3, 2, v2
    v_and_b32 v4, 3, v2
    v_lshrrev_b32 v5, 4, v1
    v_lshlrev_b32 v6, 3, v5
    v_add_u32 v6, v6, v3
    v_sub_u32 v6, 27, v6
    v_mul_u32_u24 v6, {TP}, v6
    v_lshlrev_b32 v4, 3, v4
    v_add3_u32 v6, v6, v4, s26
    s_waitcnt lgkmcnt(0)
    """)
    for cg in range(2):
        for lh in range(2):
            for h in range(2):
                off = (32 * (1 - lh) + 4 * (1 - h)) * TP + 32 * cg
                reg = 16 + 4 * (2 * cg + lh) + 2 * h
                a(f"ds_read_b64_tr_b16 v[{reg}:{reg+1}], v6 offset:{off}")
    a(f"""
    v_add_u32 v2, s24, v2
    v_lshlrev_b32 v2, 12, v2
    v_lshlrev_b32 v5, 4, v5
    v_add_u32 v2, v2, v5
    s_sub_u32 s20, 1984, s23
    s_lshl_b32 s20, s20, 1
    s_add_u32 s20, s20, {WS_UT}
    s_add_u32 s21, s20, 65536
    s_waitcnt lgkmcnt(0)
    buffer_store_dwordx4 v[16:19], v2, s[12:15], s20 offen
    buffer_store_dwordx4 v[20:23], v2, s[12:15], s20 offen offset:64
    buffer_store_dwordx4 v[24:27], v2, s[12:15], s21 offen
    buffer_store_dwordx4 v[28:31], v2, s[12:15], s21 offen offset:64
    """)
    st.stamp(); st.dump(22)
    a("s_endpgm")

def gemm(a, st):
    ACC = 16
    AF = 112
    BF = [144, 156]
    a(f"""
    s_and_b32 s16, s2, 7             ; xcd
    s_lshr_b32 s17, s2, 3            ; idx
    s_and_b32 s18, s16, 1
    s_lshl_b32 s18, s18, 3
    s_and_b32 s19, s17, 7
    s_add_u32 s18, s18, s19          ; rb
    s_lshr_b32 s19, s16, 1
    s_lshl_b32 s19, s19, 2
    s_lshr_b32 s20, s17, 3
    s_add_u32 s19, s19, s20          ; cb
    s_mov_b32 s4, s32
    s_mov_b32 s5, s33
    s_mov_b32 s6, 0x400000
    s_mov_b32 s7, 0x00020000
    s_mov_b32 s8, s34
    s_mov_b32 s9, s35
    s_mov_b32 s10, 0x600000
    s_mov_b32 s11, 0x00020000
    s_and_b32 s20, s22, 1
    s_cmp_eq_u32 s20, 0
    s_cselect_b32 s84, s32, s34
    s_cselect_b32 s85, s33, s35
    s_cselect_b32 s86, 0x400000, s10
    s_mov_b32 s87, 0x00020000
    s_mov_b32 s21, {128*6144}
    s_cselect_b32 s89, 256, s21
    s_and_b32 s20, s16, 1
    s_lshl_b32 s20, s20, 10
    s_lshl_b32 s21, s17, 5
    s_add_u32 s20, s20, s21
    v_and_b32 v9, 31, v1
    v_add_u32 v9, s20, v9
    v_lshlrev_b32 v9, 11, v9
    v_lshrrev_b32 v10, 5, v1
    v_lshlrev_b32 v10, 7, v10
    v_add_u32 v9, v9, v10
    s_lshl_b32 s20, s17, 2
    v_lshrrev_b32 v10, 4, v1
    v_add_u32 v10, s20, v10
    v_mul_u32_u24 v10, 6144, v10
    v_and_b32 v11, 15, v1
    v_min_u32 v11, 11, v11
    v_lshrrev_b32 v12, 2, v11
    v_lshlrev_b32 v12, 11, v12
    v_and_b32 v11, 3, v11
    v_lshlrev_b32 v11, 7, v11
    v_add3_u32 v10, v10, v11, v12
    s_lshr_b32 s20, s16, 1
    s_lshl_b32 s20, s20, 9
    v_add_u32 v10, s20, v10
    s_and_b32 s20, s22, 1
    v_cmp_eq_u32 vcc, 0, s20
    v_cndmask_b32 v219, v10, v9, vcc
    s_mov_b32 s88, 0
    s_lshl_b32 s20, s18, 7
    s_lshl_b32 s21, s22, 5
    s_add_u32 s20, s20, s21
    v_lshrrev_b32 v2, 3, v1
    v_add_u32 v2, s20, v2
    v_lshlrev_b32 v2, 11, v2
    v_and_b32 v3, 7, v1
    v_lshrrev_b32 v4, 4, v1
    v_xor_b32 v3, v3, v4
    v_lshlrev_b32 v3, 4, v3
    v_add_u32 v216, v2, v3
    v_xor_b32 v3, 64, v3
    v_add_u32 v217, v2, v3
    v_add_u32 v217, 16384, v217
    s_lshl_b32 s20, s22, 3
    v_lshrrev_b32 v3, 3, v1
    v_add_u32 v3, s20, v3
    v_mul_u32_u24 v3, 6144, v3
    s_lshl_b32 s20, s19, 7
    v_add_u32 v3, s20, v3
    v_and_b32 v4, 7, v1
    v_lshrrev_b32 v5, 4, v1
    v_and_b32 v5, 1, v5
    v_lshlrev_b32 v5, 2, v5
    v_xor_b32 v4, v4, v5
    v_lshlrev_b32 v4, 4, v4
    v_add_u32 v218, v3, v4
    s_lshl_b32 s62, s22, 12          ; A m0 base
    s_lshl_b32 s63, s22, 10
    s_add_u32 s63, s63, {BB}         ; B m0 base
    s_mov_b32 s27, 0
    s_mov_b32 s28, 0
    """)
    def dmaA(slot):
        o = slot * 16384
        return [
            f"s_add_u32 m0, s62, {o}\ns_add_u32 s31, s27, 32768\nbuffer_load_dwordx4 v216, s[4:7], s27 offen lds",
            f"s_add_u32 m0, s62, {o+1024}\ns_nop 0\nbuffer_load_dwordx4 v217, s[4:7], s27 offen lds",
            f"s_add_u32 m0, s62, {o+2048}\ns_nop 0\nbuffer_load_dwordx4 v216, s[4:7], s31 offen lds",
            f"s_add_u32 m0, s62, {o+3072}\ns_add_u32 s27, s27, 128\nbuffer_load_dwordx4 v217, s[4:7], s31 offen lds\ns_cmp_lt_u32 s27, 2048\ns_cselect_b32 s27, s27, 0x10000000",
        ]
    def dmaB(slot):
        o = slot * BS
        return [
            f"s_add_u32 m0, s63, {o}\ns_add_u32 s30, s28, 2048\nbuffer_load_dwordx4 v218, s[8:11], s28 offen lds",
            f"s_add_u32 m0, s63, {o+4096}\ns_add_u32 s31, s28, 4096\nbuffer_load_dwordx4 v218, s[8:11], s30 offen lds",
            f"s_add_u32 m0, s63, {o+8192}\ns_add_u32 s28, s28, 196608\nbuffer_load_dwordx4 v218, s[8:11], s31 offen lds",
        ]
    PF = "buffer_load_dword v220, v219, s[84:87], s88 offen\ns_add_u32 s88, s88, s89"
    for d in dmaA(0) + dmaB(0) + [PF] * NPF + dmaB(1) + dmaB(2) + dmaA(1): a(d)
    a(f"""
    s_and_b32 s23, s22, 1            ; rh
    s_lshr_b32 s24, s22, 1           ; hs
    v_and_b32 v10, 31, v1
    v_lshrrev_b32 v11, 5, v1
    s_lshl_b32 s20, s23, 6
    v_add_u32 v12, s20, v10
    v_lshlrev_b32 v12, 7, v12
    v_lshrrev_b32 v13, 1, v10
    v_and_b32 v13, 7, v13
    v_xor_b32 v14, v11, v13
    v_lshlrev_b32 v14, 4, v14
    v_add_u32 v4, v12, v14
    v_xor_b32 v5, 32, v4
    v_xor_b32 v6, 64, v4
    v_xor_b32 v7, 96, v4
    v_lshrrev_b32 v10, 5, v1
    v_lshlrev_b32 v10, 3, v10
    v_and_b32 v11, 15, v1
    v_lshrrev_b32 v11, 2, v11
    v_add_u32 v10, v10, v11
    v_lshlrev_b32 v10, 7, v10
    v_lshrrev_b32 v12, 4, v1
    v_and_b32 v12, 1, v12
    v_lshlrev_b32 v12, 1, v12
    v_and_b32 v13, 3, v1
    v_lshrrev_b32 v14, 1, v13
    v_add_u32 v12, v12, v14
    s_lshl_b32 s20, s24, 2
    v_add_u32 v12, s20, v12
    v_lshrrev_b32 v11, 1, v11
    v_and_b32 v11, 1, v11
    v_lshlrev_b32 v11, 2, v11
    v_xor_b32 v12, v12, v11
    v_lshlrev_b32 v12, 4, v12
    v_add_u32 v10, v10, v12
    v_and_b32 v13, 1, v13
    v_lshlrev_b32 v13, 3, v13
    v_add_u32 v10, v10, v13
    v_add_u32 v8, {BB}, v10
    """)
    for i in range(96): a(f"v_mov_b32 v{ACC+i}, 0")
    def readsA(aslot, t):
        F = AF + 8 * t
        return [f"ds_read_b128 v[{F+4*mb}:{F+4*mb+3}], v{4+t} offset:{aslot*16384 + 4096*mb}" for mb in range(2)]
    def readsB(F, bslot, ks):
        out = []
        for s in range(3):
            for h in range(2):
                off = bslot * BS + s * 4096 + (16 * ks + 4 * h) * 128
                out.append(f"ds_read_b64_tr_b16 v[{F+4*s+2*h}:{F+4*s+2*h+1}], v8 offset:{off}")
        return out
    def mfmas(t, FB):
        out = []
        for mb in range(2):
            A = f"v[{AF+8*t+4*mb}:{AF+8*t+4*mb+3}]"
            for j in range(3):
                B = f"v[{FB+4*j}:{FB+4*j+3}]"
                c = ACC + 16 * (3 * mb + j)
                C = f"v[{c}:{c+15}]"
                if j == 0: out.append(f"v_mfma_f32_32x32x16_bf16 {C}, {B}, {A}, {C}")
                else: out.append(f"v_mfma_f32_32x32x16_bf16 {C}, {A}, {B}, {C}")
        return out
    def interleave(ms, others):
        n = len(others); k = 0
        per = [3, 3, 3, 2, 2, 2]
        for i, m in enumerate(ms):
            a(m)
            for _ in range(per[i]):
                if k < n: a(others[k]); k += 1
        while k < n: a(others[k]); k += 1
    a(f"s_waitcnt vmcnt({10+NPF})\ns_barrier")
    st.stamp()
    for r in readsA(0, 0) + readsB(BF[0], 0, 0): a(r)
    a("s_mov_b32 s3, 0")
    a.label("L_g1_loop")
    for jj in range(2):
        asl = jj
        b0, b1 = 2 * jj, 2 * jj + 1
        a(f"s_waitcnt vmcnt({7 if jj == 0 else 8}) lgkmcnt(0)\ns_barrier")
        interleave(mfmas(0, BF[0]), readsB(BF[1], b0, 1) + readsA(asl, 1) + readsA(asl, 2) + readsA(asl, 3) + dmaB((b0 + 3) % 4) + ([PF] if jj == 0 else []))
        a("s_waitcnt lgkmcnt(0)")
        interleave(mfmas(1, BF[1]), readsB(BF[0], b1, 0))
        a(f"s_waitcnt vmcnt({4 if jj == 0 else 3}) lgkmcnt(0)\ns_barrier")
        interleave(mfmas(2, BF[0]), readsB(BF[1], b1, 1) + dmaB((b1 + 3) % 4) + dmaA(asl)[0:2])
        a("s_waitcnt lgkmcnt(0)")
        interleave(mfmas(3, BF[1]), readsB(BF[0], (b1 + 1) % 4, 0) + readsA(1 - asl, 0) + dmaA(asl)[2:4])
    a("s_add_u32 s3, s3, 1\ns_cmp_lt_u32 s3, 8\ns_cbranch_scc1 L_g1_loop")
    a("s_waitcnt vmcnt(0) lgkmcnt(0)")
    st.stamp()
    a("""
    s_mov_b32 s40, 0x3fb8aa3b
    s_mov_b32 s41, 0x3fb8aa3b
    s_mov_b32 s42, 0x358637bd
    s_mov_b32 s43, 0x358637bd
    s_lshl_b32 s44, s19, 1
    s_add_u32 s44, s44, s24
    v_lshlrev_b32 v10, 4, v1
    v_mov_b32 v12, 0x3f803f80
    v_mov_b32 v13, 0x3f803f80
    v_mov_b32 v14, 0x3f803f80
    v_mov_b32 v15, 0x3f803f80
    """)
    T = 152; PK = 160; KV = 112; ZA = 128
    def phi(src, dst):
        for p in range(8):
            x = src + 2 * p
            t = T + 4 * (p % 2)
            a(f"""
            v_pk_mul_f32 v[{t}:{t+1}], v[{x}:{x+1}], s[40:41]
            v_max_f32 v{t+2}, 0, v{x}
            v_max_f32 v{t+3}, 0, v{x+1}
            v_exp_f32_e64 v{t}, v{t} clamp
            v_exp_f32_e64 v{t+1}, v{t+1} clamp
            v_pk_add_f32 v[{t+2}:{t+3}], v[{t+2}:{t+3}], s[42:43]
            v_pk_add_f32 v[{t}:{t+1}], v[{t}:{t+1}], v[{t+2}:{t+3}]
            v_cvt_pk_bf16_f32 v{dst+p}, v{t}, v{t+1}
            """)
    for mb in range(2):
        q, k, v = (ACC + 16 * (3 * mb + j) for j in range(3))
        phi(k, PK)
        for p in range(8):
            a(f"v_cvt_pk_bf16_f32 v{PK+8+p}, v{v+2*p}, v{v+2*p+1}")
        for t in range(2):
            c = "0" if (mb == 0 and t == 0) else None
            Ckv = f"v[{KV}:{KV+15}]"; Cz = f"v[{ZA}:{ZA+15}]"
            a(f"v_mfma_f32_32x32x16_bf16 {Ckv}, v[{PK+4*t}:{PK+4*t+3}], v[{PK+8+4*t}:{PK+8+4*t+3}], {c or Ckv}")
            a(f"v_mfma_f32_32x32x16_bf16 {Cz}, v[{PK+4*t}:{PK+4*t+3}], v[12:15], {c or Cz}")
        phi(q, PK + 16)
        a(f"""
        s_lshl_b32 s45, s18, 2
        s_lshl_b32 s46, s23, 1
        s_add_u32 s45, s45, s46
        s_add_u32 s45, s45, {mb}
        s_lshl_b32 s45, s45, 5
        s_add_u32 s45, s45, s44
        s_lshl_b32 s45, s45, 11
        s_add_u32 s45, s45, {WS_PQ}
        buffer_store_dwordx4 v[{PK+16}:{PK+19}], v10, s[12:15], s45 offen
        buffer_store_dwordx4 v[{PK+20}:{PK+23}], v10, s[12:15], s45 offen offset:1024
        """)
    st.stamp()
    a("s_barrier")
    a(f"""
    s_lshl_b32 s45, s24, 13
    v_add_u32 v11, s45, v10
    s_cmp_eq_u32 s23, 0
    s_cbranch_scc1 L_g1_red_wait
    """)
    for j in range(4):
        a(f"ds_write_b128 v11, v[{KV+4*j}:{KV+4*j+3}] offset:{1024*j}")
    for j in range(4):
        a(f"ds_write_b128 v11, v[{ZA+4*j}:{ZA+4*j+3}] offset:{4096+1024*j}")
    a("s_waitcnt lgkmcnt(0)\ns_barrier")
    st.dump(22)
    a("s_endpgm")
    a.label("L_g1_red_wait")
    a("s_barrier")
    for j in range(8):
        a(f"ds_read_b128 v[{ACC+4*j}:{ACC+4*j+3}], v11 offset:{1024*j}")
    a("s_waitcnt lgkmcnt(0)")
    for j in range(16):
        a(f"v_pk_add_f32 v[{KV+2*j}:{KV+2*j+1}], v[{KV+2*j}:{KV+2*j+1}], v[{ACC+2*j}:{ACC+2*j+1}]")
    a(f"""
    s_lshl_b32 s45, s44, 4
    s_add_u32 s45, s45, s18
    s_lshl_b32 s46, s45, 12
    s_add_u32 s46, s46, {WS_KVP}
    s_lshl_b32 s47, s45, 7
    s_add_u32 s47, s47, {WS_ZP}
    """)
    for j in range(4):
        a(f"buffer_store_dwordx4 v[{KV+4*j}:{KV+4*j+3}], v10, s[12:15], s46 offen offset:{1024*j}")
    a("""
    v_and_b32 v11, 31, v1
    v_lshlrev_b32 v12, 1, v1
    v_cmp_eq_u32 vcc, 0, v11
    s_and_saveexec_b64 s[48:49], vcc
    """)
    for j in range(4):
        a(f"buffer_store_dwordx4 v[{ZA+4*j}:{ZA+4*j+3}], v12, s[12:15], s47 offen offset:{16*j}")
    st.stamp(); st.dump(22)
    a("s_endpgm")
```

```python
from asmlib import Asm
from layout import *
from stamps import Stamps

CS = 4288
KP = 4 * CS
WR = KP + 4608 + 64

def gen(a: Asm):
    a(f"""
    s_cmp_ge_u32 s2, 256
    s_cbranch_scc1 L_k2_end
    s_load_dwordx2 s[36:37], s[0:1], 96      ; ws
    s_load_dwordx2 s[38:39], s[0:1], 72      ; D_skip
    v_and_b32 v1, 63, v0
    v_lshrrev_b32 v2, 6, v0
    s_nop 0
    v_readfirstlane_b32 s22, v2
    s_waitcnt lgkmcnt(0)
    s_mov_b32 s12, s36
    s_mov_b32 s13, s37
    s_mov_b32 s14, 0x10000000
    s_mov_b32 s15, 0x00020000
    s_cmp_eq_u32 s22, 4
    s_cbranch_scc1 L_k2_otask
    """)
    conv(a)
    a.label("L_k2_otask")
    otask(a)
    a.label("L_k2_end")
    a("s_endpgm")
    return dict(vgpr=192, block=320, lds=4 * WR + 65536 + 2048 + 128)

def conv(a):
    ACC = 16; S0 = 48; S1 = 120
    st = Stamps(a, 1); st.stamp()
    a(f"""
    s_lshl_b32 s23, s2, 2
    s_add_u32 s23, s23, s22          ; channel d
    s_mul_i32 s26, s22, {WR}
    s_lshl_b32 s24, s23, 12          ; d*4096
    s_add_u32 s4, s36, s24
    s_addc_u32 s5, s37, 0
    s_add_u32 s4, s4, {WS_UT}
    s_addc_u32 s5, s5, 0
    s_mov_b32 s6, 4096
    s_mov_b32 s7, 0x00020000
    v_lshlrev_b32 v2, 4, v1          ; lane*16
    """)
    for it in range(4):
        b = S0 + 12 * it
        a(f"""
        buffer_load_dwordx4 v[{b}:{b+3}], v2, s[4:7], 0 offen offset:{1024*it}
        buffer_load_dwordx4 v[{b+4}:{b+7}], v2, s[4:7], 0 offen offset:{1024*it+4}
        buffer_load_dwordx2 v[{b+8}:{b+9}], v2, s[4:7], 0 offen offset:{1024*it+16}
        """)
    a(f"""
    s_add_u32 s27, s24, {WS_KT}
    s_add_u32 s28, s26, {KP+512}
    """)
    for i in range(4):
        a(f"""
        s_add_u32 m0, s28, {1024*i}
        s_add_u32 s29, s27, {1024*i}
        buffer_load_dwordx4 v2, s[12:15], s29 offen lds
        """)
    a(f"""
    s_mov_b32 s8, s38
    s_mov_b32 s9, s39
    s_mov_b32 s10, 2048
    s_mov_b32 s11, 0x00020000
    s_lshl_b32 s25, s23, 1
    v_mov_b32 v3, s25
    buffer_load_ushort v14, v3, s[8:11], 0 offen
    v_mov_b32 v4, 0
    v_mov_b32 v5, 0
    v_mov_b32 v6, 0
    v_mov_b32 v7, 0
    v_lshlrev_b32 v3, 3, v1
    v_add_u32 v3, s26, v3
    ds_write_b64 v3, v[4:5] offset:{KP}
    v_and_b32 v8, 7, v1
    v_lshlrev_b32 v8, 3, v8
    v_add_u32 v8, s26, v8
    ds_write_b64 v8, v[4:5] offset:{KP+4608}
    v_and_b32 v3, 31, v1
    v_lshrrev_b32 v8, 3, v3          ; s
    v_and_b32 v3, 7, v3              ; j
    v_add_u32 v9, 256, v3
    v_cmp_gt_u32 vcc, 2, v3
    v_cndmask_b32 v3, v9, v3, vcc
    v_lshlrev_b32 v3, 4, v3
    v_mul_u32_u24 v8, {CS}, v8
    v_add3_u32 v3, v3, v8, s26
    ds_write_b128 v3, v[4:7]
    v_add_u32 v3, s26, v2
    """)
    E = 100
    for it in range(4):
        b = S0 + 12 * it
        e = E + 8 * (it % 2)
        a(f"s_waitcnt vmcnt({17 - 3*(it+1)})")
        d = [b, b + 1, b + 2, b + 3, b + 8, b + 9]
        for k in range(4):
            a(f"v_alignbyte_b32 v{e+k}, v{d[k+1]}, v{d[k]}, 2")
        for k in range(4):
            a(f"v_alignbyte_b32 v{e+4+k}, v{d[k+2]}, v{d[k+1]}, 2")
        o = 32 + 1024 * it
        a(f"""
        ds_write_b128 v3, v[{b}:{b+3}] offset:{o}
        ds_write_b128 v3, v[{e}:{e+3}] offset:{CS+o}
        ds_write_b128 v3, v[{b+4}:{b+7}] offset:{2*CS+o}
        ds_write_b128 v3, v[{e+4}:{e+7}] offset:{3*CS+o}
        """)
    a(f"""
    v_and_b32 v4, 15, v1             ; b / a
    v_lshrrev_b32 v5, 4, v1          ; kg / g
    v_sub_u32 v6, 3, v4
    v_and_b32 v6, 3, v6              ; s
    v_mul_u32_u24 v6, {CS}, v6
    v_lshrrev_b32 v7, 2, v4
    v_lshlrev_b32 v7, 3, v7          ; 2*4*(b>>2)
    v_lshlrev_b32 v8, 4, v5          ; 2*8*kg
    v_add_u32 v6, v6, v8
    v_sub_u32 v6, v6, v7
    v_add_u32 v6, 24, v6
    v_add_u32 v6, s26, v6            ; A base
    v_lshlrev_b32 v7, 5, v4
    v_add3_u32 v7, v7, v8, s26
    v_add_u32 v7, {KP}, v7           ; B base
    """)
    for i in range(32): a(f"v_mov_b32 v{ACC+i}, 0")
    a("s_waitcnt vmcnt(0) lgkmcnt(0)")
    st.stamp()
    def reads(S, rho):
        out = []
        ii = range(9) if rho == 0 else range(8)
        ww = range(-1, 8) if rho == 0 else range(8)
        ra, rb = [], []
        for i in ii:
            q = rho + 8 * i
            off = 64 * (64 - q)
            ra.append([f"ds_read_b64 v[{S+4*i}:{S+4*i+1}], v6 offset:{off}", f"ds_read_b64 v[{S+4*i+2}:{S+4*i+3}], v6 offset:{off+8}"])
        for w in ww:
            r = 8 * w - rho
            rb.append([f"ds_read_b128 v[{S+36+4*(w+1)}:{S+36+4*(w+1)+3}], v7 offset:{64*(r+8)}"])
        for x, y in zip(ra, rb):
            out += y + x
        return out
    def mfmas(S, rho):
        out = []
        ii = range(9) if rho == 0 else range(8)
        ww = range(-1, 8) if rho == 0 else range(8)
        for i in ii:
            for w in ww:
                t = i + w
                if 0 <= t <= 7:
                    C = f"v[{ACC+4*t}:{ACC+4*t+3}]"
                    out.append(f"v_mfma_f32_16x16x32_bf16 {C}, v[{S+4*i}:{S+4*i+3}], v[{S+36+4*(w+1)}:{S+36+4*(w+1)+3}], {C}")
        return out
    for r in reads(S0, 0): a(r)
    for rho in range(8):
        S = S0 if rho % 2 == 0 else S1
        Sn = S1 if rho % 2 == 0 else S0
        a("s_waitcnt lgkmcnt(0)")
        ms = mfmas(S, rho)
        rd = reads(Sn, rho + 1) if rho < 7 else []
        k = 0
        for m in ms:
            a(m)
            if k < len(rd): a(rd[k]); k += 1
        while k < len(rd): a(rd[k]); k += 1
    st.stamp()
    a(f"""
    v_lshlrev_b32 v8, 5, v4          ; 32a
    v_lshlrev_b32 v9, 3, v5          ; 8g
    v_add_u32 v8, v8, v9
    v_sub_u32 v9, {2*(2060-1792)}, v8
    v_add_u32 v9, s26, v9
    v_lshlrev_b32 v14, 16, v14
    v_mov_b32 v15, v14
    s_add_u32 s27, s24, {WS_YT}
    s_mov_b32 s30, 0xffff0000
    """)
    U = 48
    for t in range(8):
        a(f"ds_read_b64 v[{U+2*t}:{U+2*t+1}], v9 offset:{512*(7-t)}")
    a("s_waitcnt lgkmcnt(0)")
    for t in range(8):
        T = 64 + 16 * (t % 4)
        y = ACC + 4 * t
        u0, u1 = U + 2 * t, U + 2 * t + 1
        a(f"""
        v_and_b32 v{T}, s30, v{u1}
        v_lshlrev_b32 v{T+1}, 16, v{u1}
        v_and_b32 v{T+2}, s30, v{u0}
        v_lshlrev_b32 v{T+3}, 16, v{u0}
        v_cvt_pk_bf16_f32 v{T+8}, v{y}, v{y+1}
        v_cvt_pk_bf16_f32 v{T+9}, v{y+2}, v{y+3}
        v_pk_mul_f32 v[{T}:{T+1}], v[{T}:{T+1}], v[14:15]
        v_pk_mul_f32 v[{T+2}:{T+3}], v[{T+2}:{T+3}], v[14:15]
        v_lshlrev_b32 v{T+4}, 16, v{T+8}
        v_and_b32 v{T+5}, s30, v{T+8}
        v_lshlrev_b32 v{T+6}, 16, v{T+9}
        v_and_b32 v{T+7}, s30, v{T+9}
        v_cvt_pk_bf16_f32 v{T+8}, v{T}, v{T+1}
        v_cvt_pk_bf16_f32 v{T+9}, v{T+2}, v{T+3}
        v_lshlrev_b32 v{T}, 16, v{T+8}
        v_and_b32 v{T+1}, s30, v{T+8}
        v_lshlrev_b32 v{T+2}, 16, v{T+9}
        v_and_b32 v{T+3}, s30, v{T+9}
        v_pk_add_f32 v[{T}:{T+1}], v[{T}:{T+1}], v[{T+4}:{T+5}]
        v_pk_add_f32 v[{T+2}:{T+3}], v[{T+2}:{T+3}], v[{T+6}:{T+7}]
        v_cvt_pk_bf16_f32 v{T+10}, v{T}, v{T+1}
        v_cvt_pk_bf16_f32 v{T+11}, v{T+2}, v{T+3}
        buffer_store_dwordx2 v[{T+10}:{T+11}], v8, s[12:15], s27 offen offset:{512*t}
        """)
    st.stamp(); st.dump(22)
    a("s_endpgm")

def otask(a):
    PB = 4 * WR
    KV = 16
    T = 32
    PQ = 112
    st = Stamps(a, 1); st.stamp()
    a(f"""
    s_setprio 3
    s_and_b32 s23, s2, 31            ; head
    s_lshr_b32 s24, s2, 5
    v_lshlrev_b32 v2, 4, v1          ; lane*16
    s_lshl_b32 s25, s23, 16
    s_add_u32 s25, s25, {WS_KVP}
    s_lshl_b32 s26, s23, 11
    s_add_u32 s26, s26, {WS_ZP}
    s_lshl_b32 s27, s24, 8
    s_add_u32 s27, s27, s23
    s_lshl_b32 s27, s27, 11
    s_add_u32 s28, s27, {WS_PQ}
    s_add_u32 s29, s27, {WS_O}
    s_mov_b32 m0, {PB+65536}
    s_add_u32 s30, s26, 1024
    buffer_load_dwordx4 v2, s[12:15], s26 offen lds
    s_mov_b32 m0, {PB+65536+1024}
    s_nop 0
    buffer_load_dwordx4 v2, s[12:15], s30 offen lds
    s_mov_b32 s31, {PB}
    s_mov_b32 s3, 0
    """)
    a.label("L_o_dma")
    for j in range(4):
        a(f"""
        s_add_u32 m0, s31, {1024*j}
        s_add_u32 s30, s25, {1024*j}
        buffer_load_dwordx4 v2, s[12:15], s30 offen lds
        """)
    a("s_add_u32 s31, s31, 4096\ns_add_u32 s25, s25, 4096\ns_add_u32 s3, s3, 1\ns_cmp_lt_u32 s3, 16\ns_cbranch_scc1 L_o_dma")
    for r in range(8):
        a(f"""
        buffer_load_dwordx4 v[{PQ+8*r}:{PQ+8*r+3}], v2, s[12:15], s28 offen
        buffer_load_dwordx4 v[{PQ+8*r+4}:{PQ+8*r+7}], v2, s[12:15], s28 offen offset:1024
        s_add_u32 s28, s28, 65536
        """)
    a(f"""
    v_add_u32 v3, {PB}, v2
    v_lshlrev_b32 v4, 2, v1          ; l*4 = i*4 + h*128
    v_add_u32 v4, {PB+65536}, v4
    s_waitcnt vmcnt(16)
    """)
    st.stamp()
    for p in range(8):
        a(f"ds_read_b32 v{96+p}, v4 offset:{256*p}")
    for b in range(4):
        for p in range(4):
            for j in range(4):
                dst = (KV + 4 * j) if (b == 0 and p == 0) else (T + 16 * p + 4 * j)
                a(f"ds_read_b128 v[{dst}:{dst+3}], v3 offset:{(4*b+p)*4096 + 1024*j}")
        if b == 0:
            a("s_waitcnt lgkmcnt(15)")
            a(f"""
            v_add_f32 v96, v96, v97
            v_add_f32 v98, v98, v99
            v_add_f32 v100, v100, v101
            v_add_f32 v102, v102, v103
            v_add_f32 v96, v96, v98
            v_add_f32 v100, v100, v102
            v_add_f32 v96, v96, v100
            v_mov_b32 v97, v96
            s_nop 1
            v_permlane32_swap_b32 v96, v97
            s_nop 1
            v_add_f32 v96, v96, v97
            v_and_b32 v5, 31, v1
            v_lshlrev_b32 v5, 2, v5
            v_add_u32 v5, {PB+65536+2048}, v5
            """)
        a("s_waitcnt lgkmcnt(0)")
        if b == 0:
            a("ds_write_b32 v5, v96")
        for p in range(4):
            if b == 0 and p == 0: continue
            for j in range(8):
                a(f"v_pk_add_f32 v[{KV+2*j}:{KV+2*j+1}], v[{KV+2*j}:{KV+2*j+1}], v[{T+16*p+2*j}:{T+16*p+2*j+1}]")
    a(f"""
    v_lshrrev_b32 v5, 5, v1
    v_lshlrev_b32 v5, 6, v5
    v_add_u32 v5, {PB+65536+2048}, v5
    s_waitcnt lgkmcnt(0)
    ds_read_b128 v[32:35], v5
    ds_read_b128 v[36:39], v5 offset:16
    ds_read_b128 v[40:43], v5 offset:32
    ds_read_b128 v[44:47], v5 offset:48
    """)
    KA = 96
    for j in range(8):
        a(f"v_cvt_pk_bf16_f32 v{KA+j}, v{KV+2*j}, v{KV+2*j+1}")
    a("s_waitcnt lgkmcnt(0)")
    for j in range(8):
        a(f"v_cvt_pk_bf16_f32 v{KA+8+j}, v{32+2*j}, v{33+2*j}")
    a("s_mov_b32 s31, 0x358637bd\ns_waitcnt vmcnt(0)")
    st.stamp()
    NUM = [16, 48]; DEN = [32, 64]
    def mm(r):
        p = PQ + 8 * r
        N = f"v[{NUM[r%2]}:{NUM[r%2]+15}]"; Dn = f"v[{DEN[r%2]}:{DEN[r%2]+15}]"
        return [f"v_mfma_f32_32x32x16_bf16 {Dn}, v[{KA+8}:{KA+11}], v[{p}:{p+3}], 0",
                f"v_mfma_f32_32x32x16_bf16 {N}, v[{KA}:{KA+3}], v[{p}:{p+3}], 0",
                f"v_mfma_f32_32x32x16_bf16 {Dn}, v[{KA+12}:{KA+15}], v[{p+4}:{p+7}], {Dn}",
                f"v_mfma_f32_32x32x16_bf16 {N}, v[{KA+4}:{KA+7}], v[{p+4}:{p+7}], {N}"]
    def fin(r):
        p = PQ + 8 * r; Nn = NUM[r % 2]; Dd = DEN[r % 2]
        out = [f"v_cvt_pk_bf16_f32 v4, v{Dd}, v{Dd}", "v_lshlrev_b32 v4, 16, v4", "v_add_f32 v4, s31, v4",
               "v_cvt_pk_bf16_f32 v4, v4, v4", "v_lshlrev_b32 v4, 16, v4", "v_rcp_f32 v4, v4"]
        out += [f"v_pk_mul_f32 v[{Nn+2*j}:{Nn+2*j+1}], v[{Nn+2*j}:{Nn+2*j+1}], v[4:5] op_sel_hi:[1,0]" for j in range(8)]
        out += [f"v_cvt_pk_bf16_f32 v{p+j}, v{Nn+2*j}, v{Nn+2*j+1}" for j in range(8)]
        out += [f"buffer_store_dwordx4 v[{p}:{p+3}], v2, s[12:15], s29 offen",
                f"buffer_store_dwordx4 v[{p+4}:{p+7}], v2, s[12:15], s29 offen offset:1024",
                "s_add_u32 s29, s29, 65536"]
        return out
    for m in mm(0): a(m)
    for r in range(8):
        nxt = mm(r + 1) if r < 7 else []
        for m in nxt: a(m)
        for f in fin(r): a(f)
    st.stamp(); st.dump(22)
    a("s_endpgm")
```

```python
from asmlib import Asm
from layout import *
from stamps import Stamps

TB = 131072
TP = 144

class VM:
    def __init__(self, a): self.a = a; self.q = []
    def issue(self, tag, text): self.a(text); self.q.append(tag)
    def wait(self, tag):
        last = max(i for i, t in enumerate(self.q) if t == tag)
        n = len(self.q) - 1 - last
        assert n <= 63
        self.a(f"s_waitcnt vmcnt({n})")

def gen(a: Asm):
    vm = VM(a)
    a(f"""
    s_cmp_ge_u32 s2, 256
    s_cbranch_scc1 L_k3_end
    s_load_dwordx2 s[36:37], s[0:1], 96      ; ws
    s_load_dwordx2 s[38:39], s[0:1], 16      ; wo
    s_load_dwordx2 s[40:41], s[0:1], 80      ; out
    v_and_b32 v1, 63, v0
    v_lshrrev_b32 v2, 6, v0
    s_nop 0
    v_readfirstlane_b32 s22, v2
    s_and_b32 s16, s2, 7
    s_lshr_b32 s17, s2, 3
    s_and_b32 s18, s16, 3
    s_lshl_b32 s18, s18, 2
    s_and_b32 s19, s17, 3
    s_add_u32 s18, s18, s19          ; rb
    s_lshr_b32 s19, s16, 2
    s_lshl_b32 s19, s19, 3
    s_lshr_b32 s20, s17, 2
    s_add_u32 s19, s19, s20          ; cb
    s_waitcnt lgkmcnt(0)
    s_mov_b32 s4, s38
    s_mov_b32 s5, s39
    s_mov_b32 s6, 0x200000
    s_mov_b32 s7, 0x00020000
    s_mov_b32 s8, s40
    s_mov_b32 s9, s41
    s_mov_b32 s10, 0x800000
    s_mov_b32 s11, 0x00020000
    s_mov_b32 s12, s36
    s_mov_b32 s13, s37
    s_mov_b32 s14, 0x10000000
    s_mov_b32 s15, 0x00020000
    s_lshr_b32 s23, s2, 5
    s_lshl_b32 s23, s23, 7           ; d0
    s_and_b32 s24, s2, 31
    s_lshl_b32 s24, s24, 6           ; l0
    v_lshrrev_b32 v2, 3, v0          ; row 0..31
    v_and_b32 v3, 7, v0
    v_lshlrev_b32 v3, 4, v3
    v_add_u32 v4, s23, v2
    v_lshlrev_b32 v4, 12, v4
    v_add_u32 v4, v4, v3
    s_lshl_b32 s25, s24, 1
    s_add_u32 s25, s25, {WS_YT}
    v_mul_u32_u24 v5, {TP}, v2
    v_add_u32 v5, v5, v3
    v_add_u32 v15, {TB}, v5
    """)
    YR = 16
    st = Stamps(a, 2); st.stamp()
    for i in range(4):
        vm.issue("Y", f"s_add_u32 s26, s25, {i*32*4096}\nbuffer_load_dwordx4 v[{YR+4*i}:{YR+4*i+3}], v4, s[12:15], s26 offen")
    a(f"""
    s_lshl_b32 s26, s22, 5
    v_lshrrev_b32 v6, 3, v1
    v_add_u32 v6, s26, v6
    v_lshlrev_b32 v6, 11, v6
    s_lshl_b32 s26, s19, 7
    v_add_u32 v6, s26, v6
    v_and_b32 v8, 7, v1
    v_lshrrev_b32 v9, 4, v1
    v_and_b32 v9, 1, v9
    v_lshlrev_b32 v9, 2, v9
    v_xor_b32 v8, v8, v9
    v_lshlrev_b32 v8, 4, v8
    v_add_u32 v6, v6, v8
    v_lshlrev_b32 v7, 4, v1
    s_lshl_b32 s27, s22, 12          ; m0 base: 32w*128
    s_lshl_b32 s28, s18, 2
    s_add_u32 s28, s28, s22
    s_lshl_b32 s28, s28, 16
    s_add_u32 s28, s28, {WS_O}
    """)
    AB = [64, 96, 128]
    def D(c):
        for jj in range(4):
            vm.issue(f"D{c}", f"s_add_u32 m0, s27, {(128*c+8*jj)*128}\ns_mov_b32 s29, {(128*c+8*jj)*2048}\nbuffer_load_dwordx4 v6, s[4:7], s29 offen lds")
    def Aload(c):
        B = AB[c % 3]
        for n in range(8):
            off = (8 * c + n) * 1024
            vm.issue(f"A{c}", f"s_add_u32 s29, s28, {off}\nbuffer_load_dwordx4 v[{B+4*n}:{B+4*n+3}], v7, s[12:15], s29 offen")
    D(0); Aload(0); D(1); Aload(1); D(2)
    st.stamp()
    a(f"""
    v_lshrrev_b32 v10, 5, v1         ; kg
    v_lshlrev_b32 v10, 2, v10
    v_and_b32 v11, 15, v1
    v_lshrrev_b32 v11, 2, v11        ; r4
    v_add_u32 v10, v10, v11
    v_lshlrev_b32 v10, 7, v10        ; (4kg+r4)*128
    v_lshrrev_b32 v12, 4, v1
    v_and_b32 v12, 1, v12
    v_lshlrev_b32 v12, 1, v12        ; 2ch
    v_and_b32 v13, 3, v1
    v_lshrrev_b32 v14, 1, v13
    v_add_u32 v12, v12, v14
    v_lshrrev_b32 v11, 1, v11
    v_and_b32 v11, 1, v11
    v_lshlrev_b32 v11, 2, v11
    v_xor_b32 v12, v12, v11
    v_lshlrev_b32 v12, 4, v12
    v_add_u32 v10, v10, v12
    v_and_b32 v13, 1, v13
    v_lshlrev_b32 v13, 3, v13
    v_add_u32 v10, v10, v13
    v_xor_b32 v11, 64, v10
    v_add_u32 v12, 16384, v10
    v_add_u32 v13, 16384, v11
    """)
    ACC = 32
    BB = 160
    def breads(n):
        c = n >> 3
        ra = (10, 11) if c % 2 == 0 else (12, 13)
        R = BB + 8 * (n % 4)
        out = []
        for ct in range(2):
            for hh in range(2):
                off = ((n & 7) * 16 + 8 * hh) * 128
                out.append(f"ds_read_b64_tr_b16 v[{R+4*ct+2*hh}:{R+4*ct+2*hh+1}], v{ra[ct]} offset:{off}")
        return out
    a(f"""
    v_and_b32 v2, 15, v1             ; i
    v_lshrrev_b32 v3, 2, v2          ; r
    v_and_b32 v4, 3, v2              ; c
    v_lshrrev_b32 v5, 4, v1          ; g4
    v_lshlrev_b32 v8, 3, v5
    v_add_u32 v8, v8, v3
    s_lshl_b32 s26, s22, 5
    v_add_u32 v8, s26, v8
    v_mul_u32_u24 v8, {TP}, v8
    v_lshlrev_b32 v4, 3, v4
    v_add_u32 v8, v8, v4
    v_add_u32 v8, {TB}, v8
    v_add_u32 v2, s24, v2
    v_lshlrev_b32 v2, 12, v2
    v_lshlrev_b32 v5, 4, v5
    v_add_u32 v9, v2, v5
    s_lshl_b32 s26, s22, 6
    s_lshl_b32 s30, s23, 1
    s_add_u32 s26, s26, s30
    s_add_u32 s30, s26, 2048
    """)
    vm.wait("A0")
    a("s_barrier")
    st.stamp()
    for n in range(3):
        for r in breads(n): a(r)
    for n in range(64):
        c = n >> 3
        if n % 8 == 0 and n > 0:
            vm.wait(f"A{c}")
        if n % 8 == 4 and c < 7:
            vm.wait(f"D{c+1}")
            a("s_barrier")
        inflight = min(2, 63 - n) * 4
        a(f"s_waitcnt lgkmcnt({inflight})")
        R = BB + 8 * (n % 4)
        Af = AB[c % 3] + 4 * (n & 7)
        rd = breads(n + 3) if n + 3 < 64 else []
        for ct in range(2):
            C = f"v[{ACC+16*ct}:{ACC+16*ct+15}]"
            a(f"v_mfma_f32_32x32x16_bf16 {C}, v[{R+4*ct}:{R+4*ct+3}], v[{Af}:{Af+3}], {'0' if n == 0 else C}")
            for r in rd[2*ct:2*ct+2]: a(r)
        if n == 0:
            for i in range(4):
                a(f"ds_write_b128 v15, v[{YR+4*i}:{YR+4*i+3}] offset:{32*i*TP}")
        if n == 5:
            for cg in range(4):
                for h in range(2):
                    a(f"ds_read_b64_tr_b16 v[{YR+4*cg+2*h}:{YR+4*cg+2*h+1}], v8 offset:{4*h*TP + 32*cg}")
        if n == 9:
            for cg in range(4):
                vm.issue("S", f"s_add_u32 s29, s30, {cg*16*4096}\nbuffer_store_dwordx4 v[{YR+4*cg}:{YR+4*cg+3}], v9, s[8:11], s29 offen")
        if n % 8 == 4:
            if c + 2 < 8: Aload(c + 2)
            if c + 3 < 8: D(c + 3)
        if n % 8 == 4 and c + 2 < 8:
            ra = (10, 11) if c % 2 == 0 else (12, 13)
            a(f"v_add_u32 v{ra[0]}, 32768, v{ra[0]}\nv_add_u32 v{ra[1]}, 32768, v{ra[1]}")
    st.stamp()
    a(f"""
    v_and_b32 v2, 31, v1
    s_lshl_b32 s26, s18, 7
    s_lshl_b32 s29, s22, 5
    s_add_u32 s26, s26, s29
    v_add_u32 v2, s26, v2
    v_lshlrev_b32 v2, 12, v2
    v_lshrrev_b32 v3, 5, v1
    v_lshlrev_b32 v3, 3, v3
    v_add_u32 v2, v2, v3
    s_lshl_b32 s26, s19, 7
    """)
    for j in range(16):
        a(f"v_cvt_pk_bf16_f32 v{64+j}, v{ACC+2*j}, v{ACC+2*j+1}")
    for ct in range(2):
        for g4 in range(4):
            r = 64 + 8 * ct + 2 * g4
            a(f"buffer_store_dwordx2 v[{r}:{r+1}], v2, s[8:11], s26 offen offset:{64*ct+16*g4}")
    st.stamp(); st.dump(22)
    a.label("L_k3_end")
    a("s_endpgm")
    return dict(vgpr=192, block=256, lds=TB + 128 * TP)
```

```python
import os
ENABLED = os.environ.get("STAMPS", "0") == "1"
WS_DBG = 28 << 20
class Stamps:
    def __init__(self, a, kidx): self.a = a; self.n = 0; self.kidx = kidx
    def stamp(self):
        if not ENABLED: return
        k = self.n; self.n += 1
        assert k < 14
        self.a(f"{INS} s[{64+2*k}:{65+2*k}]\ns_waitcnt lgkmcnt(0)")
    def reset(self): self.n = 0
    def dump(self, wave_sgpr, vtmp=0):
        if not ENABLED: return
        a = self.a
        a(f"""
        s_mov_b64 exec, -1
        s_lshl_b32 s94, s2, 3
        s_add_u32 s94, s94, s{wave_sgpr}
        s_lshl_b32 s94, s94, 7
        s_add_u32 s94, s94, {WS_DBG + self.kidx * (1 << 20)}
        v_mov_b32 v{vtmp}, 0
        """)
        for k in range(self.n):
            a(f"v_mov_b32 v{vtmp+1}, s{64+2*k}\nbuffer_store_dword v{vtmp+1}, v{vtmp}, s[12:15], s94 offen offset:{4*k}")
        a("s_waitcnt vmcnt(0)")
```

```python
import sys, os
from asmlib import Asm
from layout import *

HEADER = open("cdna_kernels/" + NAME + ".s.ref").read().split("; Override launch")[0]

def kernel_desc(name, vgpr, sgpr=96):
    return f"""
.section .rodata,"a"
.p2align 6
.amdhsa_kernel {name}
  .amdhsa_next_free_vgpr {vgpr}
  .amdhsa_next_free_sgpr {sgpr}
  .amdhsa_accum_offset {((vgpr+3)//4)*4}
  .amdhsa_group_segment_fixed_size 0
  .amdhsa_kernarg_size 104
  .amdhsa_user_sgpr_count 2
  .amdhsa_user_sgpr_kernarg_segment_ptr 1
  .amdhsa_system_sgpr_workgroup_id_x 1
.end_amdhsa_kernel
"""

def kernel_text(name, body):
    return f"""
.text
.globl {name}
.p2align 8
.type {name},@function
{name}:
{body}
"""

def build(stages=("k1",), out=None):
    launches = []; texts = []; descs = []
    if "k1" in stages:
        import k1
        a = Asm(); info = k1.gen(a)
        texts.append(kernel_text("k1_kernel", a.finalize()))
        descs.append(kernel_desc("k1_kernel", info["vgpr"]))
        launches.append(f"; @launch kernel=k1_kernel grid=({info.get('grid',256)},1,1) block=({info['block']},1,1) lds={info['lds']}")
    if "k2" in stages:
        import k2
        a = Asm(); info = k2.gen(a)
        texts.append(kernel_text("k2_kernel", a.finalize()))
        descs.append(kernel_desc("k2_kernel", info["vgpr"]))
        launches.append(f"; @launch kernel=k2_kernel grid=(256,1,1) block=({info['block']},1,1) lds={info['lds']}")
    if "k3" in stages:
        import k3
        a = Asm(); info = k3.gen(a)
        texts.append(kernel_text("k3_kernel", a.finalize()))
        descs.append(kernel_desc("k3_kernel", info["vgpr"]))
        launches.append(f"; @launch kernel=k3_kernel grid=(256,1,1) block=({info['block']},1,1) lds={info['lds']}")
    s = HEADER + "\n".join(launches) + '\n.amdgcn_target "amdgcn-amd-amdhsa--gfx950"\n' + "".join(texts) + "".join(descs)
    open(out, "w").write(s)

if __name__ == "__main__":
    stages = sys.argv[1].split(",")
    build(stages, sys.argv[2])
```

```python
import re, os
STORE_FLAGS = os.environ.get('STORE_FLAGS', '')

TRANS = ("v_exp_f32", "v_log_f32", "v_rcp_f32", "v_rsq_f32", "v_sqrt_f32", "v_sin_f32", "v_cos_f32", "v_rcp_iflag_f32")
REG_RE = re.compile(r"\b([vs])(\d+)\b|\b([vs])\[(\d+):(\d+)\]|\b(vcc|exec|m0|scc)\b")

def regs_of(tok):
    out = []
    for m in REG_RE.finditer(tok):
        if m.group(1):
            out.append((m.group(1), int(m.group(2))))
        elif m.group(3):
            for i in range(int(m.group(4)), int(m.group(5)) + 1):
                out.append((m.group(3), i))
        else:
            out.append((m.group(6), 0))
    return out

def split_ops(s):
    ops, depth, cur = [], 0, ""
    for ch in s:
        if ch == "[": depth += 1
        if ch == "]": depth -= 1
        if ch == "," and depth == 0:
            ops.append(cur.strip()); cur = ""
        else:
            cur += ch
    if cur.strip(): ops.append(cur.strip())
    return ops

class Ins:
    __slots__ = ("text", "op", "kind", "w", "r", "passes", "ws", "mA", "mC", "store_wide", "is_lds_dma", "rmask")
    def __init__(self, text):
        self.text = text
        t = text.split(";")[0].strip()
        self.op = None; self.kind = "none"; self.w = []; self.r = []; self.passes = 0; self.ws = 0
        self.mA = []; self.mC = []; self.store_wide = []; self.is_lds_dma = False; self.rmask = []
        if not t or t.endswith(":") or t.startswith("."):
            return
        parts = t.split(None, 1)
        op = parts[0]; self.op = op
        rest = parts[1] if len(parts) > 1 else ""
        ops = split_ops(rest)
        self.ws = 1
        if op == "s_nop":
            self.ws = int(ops[0], 0) + 1; self.kind = "nop"; return
        if op in ("s_waitcnt", "s_barrier", "s_endpgm", "s_setprio", "s_sleep") or op.startswith("s_cbranch") or op == "s_branch":
            self.kind = "ctl"; return
        R = lambda xs: [g for x in xs for g in regs_of(x)]
        if op.startswith("v_mfma"):
            self.kind = "mfma"
            self.passes = 8 if "32x32x16" in op else (4 if "16x16x32" in op else 16)
            self.w = R(ops[:1]); self.mA = R(ops[1:3]); self.mC = R(ops[3:4]); self.r = self.mA + self.mC
            return
        if op.startswith("buffer_store") or op.startswith("global_store") or op.startswith("ds_write"):
            self.kind = "ds" if op.startswith("ds_") else "vmem"
            self.r = R(ops)
            if self.kind == "vmem" and ("x4" in op or "x3" in op):
                data = ops[0] if op.startswith("buffer") else ops[1]
                self.store_wide = regs_of(data)
            return
        if op.startswith("buffer_load") or op.startswith("global_load"):
            self.kind = "vmem"
            if re.search(r"\blds\b", rest) or "_lds_" in op:
                self.is_lds_dma = True; self.r = R(ops) + [("m0", 0)]
            else:
                self.w = R(ops[:1]); self.r = R(ops[1:])
            return
        if op.startswith("buffer_atomic") or op.startswith("global_atomic"):
            self.kind = "vmem"; self.r = R(ops); return
        if op.startswith("ds_"):
            self.kind = "ds"; self.w = R(ops[:1]); self.r = R(ops[1:])
            if "d16" in op: self.r += self.w
            return
        if op in ("s_getpc_b64",):
            self.kind = "salu"; self.w = R(ops[:1]); return
        if op.startswith("s_load") or op.startswith("s_memtime") or op.startswith("s_memrealtime"):
            self.kind = "smem"; self.w = R(ops[:1]); self.r = R(ops[1:]); return
        if op.startswith("s_"):
            self.kind = "salu"
            if op.startswith("s_cmp"):
                self.r = R(ops); return
            self.w = R(ops[:1]); self.r = R(ops[1:])
            if "saveexec" in op: self.w += [("exec", 0)]
            return
        if op.startswith("v_"):
            self.kind = "trans" if op.split("_e")[0] in TRANS else "valu"
            if op.startswith("v_cmp"):
                self.w = R(ops[:1]); self.r = R(ops[1:]); return
            if op.startswith("v_permlane"):
                self.w = R(ops); self.r = R(ops); self.kind = "permlane"; return
            if op.startswith("v_add_co") or op.startswith("v_sub_co") or op.startswith("v_addc") or op.startswith("v_subb"):
                self.w = R(ops[:2]); self.r = R(ops[2:]); return
            self.w = R(ops[:1]); self.r = R(ops[1:])
            if op.startswith("v_cndmask"):
                if len(ops) == 3: self.r += [("vcc", 0)]
            if op.startswith("v_fmac") or op.startswith("v_pk_fmac"): self.r += self.w
            return
        raise ValueError("unknown instr " + text)

def is_valu(i): return i.kind in ("valu", "trans", "permlane")

def need_between(p, c):
    n = 0
    pw = set(p.w); cr = set(c.r); cw = set(c.w)
    if is_valu(p):
        vw = {x for x in pw if x[0] == "v"}
        sw = {x for x in pw if x[0] in ("s", "vcc")}
        if c.kind == "mfma" and vw & cr: n = max(n, 2)
        if c.kind == "vmem" and sw & cr: n = max(n, 5)
        if is_valu(c) and sw & cr: n = max(n, 4 if c.op.startswith("v_readlane") or c.op.startswith("v_writelane") else 2)
        if c.op and (c.op.startswith("v_readfirstlane") or c.op.startswith("v_readlane")) and vw & cr: n = max(n, 1)
        if p.kind == "trans" and is_valu(c) and c.kind != "trans" and vw & cr: n = max(n, 1)
        if c.kind == "permlane" and vw & cr: n = max(n, 2)
        if "dpp" in c.text and vw & cr: n = max(n, 2)
        if c.kind == "salu" and sw & cr: n = max(n, 1)
    if p.kind == "mfma":
        big = {2: 5, 4: 8, 8: 12, 16: 20}[p.passes]
        if c.kind == "mfma":
            if pw & set(c.mA): n = max(n, big)
            if pw & set(c.mC):
                if not (set(c.mC) == pw and c.passes == p.passes): n = max(n, {2: 4, 4: 6, 8: 10, 16: 18}[p.passes])
        elif c.kind in ("valu", "trans", "permlane", "vmem", "ds"):
            if pw & (cr | cw): n = max(n, big)
            if is_valu(c) and set(p.mC) & cw: n = max(n, {2: 1, 4: 3, 8: 7, 16: 15}[p.passes])
    if p.kind == "salu" and ("m0", 0) in pw and (c.is_lds_dma): n = max(n, 1)
    if p.store_wide and set(p.store_wide) & cw: n = max(n, 2 if is_valu(c) else 1)
    return n

class Asm:
    def __init__(self, store_flags=''):
        self.ins = []
        self.sf = store_flags
    def __call__(self, text):
        for line in text.split("\n"):
            line = line.strip()
            if line.startswith('buffer_store') and 'NOSF' in line: line = line.replace(' NOSF', '')
            elif line.startswith('buffer_store') and self.sf: line = line.split(';')[0].rstrip() + ' ' + self.sf
            if line: self.ins.append(Ins(line))
    def label(self, name): self.ins.append(Ins(name + ":"))
    def finalize(self):
        out = []
        for c in self.ins:
            if c.ws:
                need = 0; dist = 0
                for p in reversed(out):
                    if dist >= 24: break
                    if p.ws == 0: continue
                    k = need_between(p, c)
                    if k > dist: need = max(need, k - dist)
                    dist += p.ws
                while need > 0:
                    k = min(need, 16)
                    out.append(Ins(f"s_nop {k-1}")); need -= k
            out.append(c)
        self.ins = out
        return "\n".join(("    " + i.text) if i.ws else i.text for i in out)
```

```python
from asmlib import Asm
from layout import *
from stamps import Stamps
import struct, math, os

def f2u(x): return struct.unpack("<I", struct.pack("<f", x))[0]
L2E = math.log2(math.e)
L2E_HI = struct.unpack("<f", struct.pack("<I", 0x3fb8aa3b))[0]
L2E_LO = L2E - L2E_HI

AUXW = 6912
TP = 80
BB = 32768
BS = 12288
NPF = int(os.environ.get('NPF', '3'))

def gen(a: Asm):
    st = Stamps(a, 0)
    a(f"""
    s_cmp_ge_u32 s2, 512
    s_cbranch_scc1 L_k1_end
    s_xor_b32 s2, s2, {256 if os.environ.get('AUXFIRST','0')=='1' else 0}
    s_load_dwordx8 s[32:39], s[0:1], 0
    s_load_dwordx8 s[48:55], s[0:1], 32
    s_load_dwordx2 s[56:57], s[0:1], 64      ; log_dt
    s_load_dwordx2 s[58:59], s[0:1], 96      ; ws
    v_and_b32 v1, 63, v0
    v_lshrrev_b32 v2, 6, v0
    s_nop 0
    v_readfirstlane_b32 s22, v2      ; wave 0..3
    s_waitcnt lgkmcnt(0)
    s_mov_b32 s12, s58
    s_mov_b32 s13, s59
    s_mov_b32 s14, 0x10000000
    s_mov_b32 s15, 0x00020000
    """)
    st.stamp()
    a("s_cmp_ge_u32 s2, 256\ns_cbranch_scc1 L_k1_aux")
    sv = st.n
    gemm(a, st)
    st.n = sv
    a.label("L_k1_aux")
    aux(a, st)
    a.label("L_k1_end")
    a("s_endpgm")
    return dict(vgpr=224, block=256, lds=81920, grid=256 if os.environ.get('NOAUX') == '1' else 512)

def aux(a, st):
    a(f"""
    s_sub_u32 s16, s2, 256           ; g
    v_lshlrev_b32 v2, 6, v1
    v_mov_b32 v3, 0
    s_mov_b32 s20, {WS_FLG}
    s_or_b32 s21, s16, s22
    s_cmp_lg_u32 s21, 0
    s_cbranch_scc1 L_k1_noflag
    buffer_store_dword v3, v2, s[12:15], s20 offen
    L_k1_noflag:
    s_lshl_b32 s25, s16, 2
    s_add_u32 s25, s25, s22          ; d
    s_lshl_b32 s26, s25, 8
    v_lshlrev_b32 v7, 1, v1
    s_mov_b32 s46, 0x40000
    s_mov_b32 s47, 0x00020000
    """)
    for idx, lo in enumerate((48, 50, 52, 54)):
        a(f"""
        s_mov_b32 s44, s{lo}
        s_mov_b32 s45, s{lo+1}
        buffer_load_ushort v{32+2*idx}, v7, s[44:47], s26 offen
        buffer_load_ushort v{33+2*idx}, v7, s[44:47], s26 offen offset:128
        """)
    a(f"""
    s_mov_b32 s44, s56
    s_mov_b32 s45, s57
    s_mov_b32 s46, 2048
    s_lshl_b32 s20, s25, 1
    v_mov_b32 v8, s20
    buffer_load_ushort v40, v8, s[44:47], 0 offen
    s_mul_i32 s26, s22, {AUXW}
    s_mov_b32 s40, 0x3fb8aa3b
    s_mov_b32 s41, {f2u(L2E_LO)}
    s_mov_b32 s42, {f2u(math.log(2.0))}
    s_mov_b32 s43, {f2u(1.0/(2*math.pi))}
    s_waitcnt vmcnt(0)
    """)
    st.stamp()
    for i in range(9): a(f"v_lshlrev_b32 v{32+i}, 16, v{32+i}")
    def exp_bf16(dst, src, t):
        a(f"""
        v_mul_f32 v{t}, s40, v{src}
        v_fma_f32 v{t+1}, v{src}, s40, -v{t}
        v_fma_f32 v{t+1}, v{src}, s41, v{t+1}
        v_exp_f32 v{t}, v{t}
        v_mul_f32 v{t+1}, s42, v{t+1}
        v_fma_f32 v{t}, v{t}, v{t+1}, v{t}
        v_cvt_pk_bf16_f32 v{t}, v{t}, v{t}
        v_lshlrev_b32 v{dst}, 16, v{t}
        """)
    exp_bf16(40, 40, 56)
    exp_bf16(32, 32, 58)
    exp_bf16(33, 33, 60)
    a(f"""
    v_max_f32_e64 v44, |v36|, |v37|
    v_max3_f32 v44, |v38|, |v39|, v44
    s_nop 1
    v_max_f32_dpp v44, v44, v44 row_ror:1 row_mask:0xf bank_mask:0xf
    s_nop 1
    v_max_f32_dpp v44, v44, v44 row_ror:2 row_mask:0xf bank_mask:0xf
    s_nop 1
    v_max_f32_dpp v44, v44, v44 row_ror:4 row_mask:0xf bank_mask:0xf
    s_nop 1
    v_max_f32_dpp v44, v44, v44 row_ror:8 row_mask:0xf bank_mask:0xf
    s_nop 1
    v_readlane_b32 s32, v44, 0
    v_readlane_b32 s33, v44, 16
    v_readlane_b32 s34, v44, 32
    v_readlane_b32 s35, v44, 48
    s_nop 1
    s_max_u32 s32, s32, s33
    s_max_u32 s34, s34, s35
    s_max_u32 s32, s32, s34
    s_lshr_b32 s32, s32, 23
    s_min_u32 s32, s32, 252
    s_sub_u32 s33, 253, s32
    s_lshl_b32 s33, s33, 23          ; scale
    s_add_u32 s32, s32, 1
    s_lshl_b32 s32, s32, 23
    v_add_f32 v46, v40, v40
    v_mul_f32 v111, s32, v46
    """)
    for h in range(2):
        P = 48 + 4 * h
        a(f"""
        v_mul_f32 v{P}, v{32+h}, v40
        v_mul_f32 v{P+1}, v{34+h}, v40
        v_mul_f32 v{P+2}, s33, v{36+h}
        v_mul_f32 v{P+3}, s33, v{38+h}
        v_mul_f32 v{P}, s40, v{P}
        v_mul_f32 v{P+1}, s43, v{P+1}
        v_sub_f32 v{P}, 0, v{P}
        """)
    a(f"""
    v_lshlrev_b32 v2, 4, v1
    v_add_u32 v2, s26, v2
    ds_write_b128 v2, v[48:51]
    ds_write_b128 v2, v[52:55] offset:1024
    v_and_b32 v3, 15, v1             ; idx
    v_lshrrev_b32 v4, 4, v1          ; kg / g
    v_and_b32 v5, 7, v3
    v_lshrrev_b32 v6, 3, v3
    v_lshl_add_u32 v8, v6, 7, v5
    v_and_b32 v6, 3, v3
    v_lshlrev_b32 v6, 1, v6
    v_lshrrev_b32 v7, 2, v3
    v_lshl_add_u32 v6, v7, 7, v6
    v_add_u32 v6, 256, v6
    v_and_b32 v7, 1, v3
    v_lshlrev_b32 v7, 2, v7
    v_lshrrev_b32 v9, 1, v3
    v_and_b32 v9, 3, v9
    v_lshl_add_u32 v7, v9, 7, v7
    v_add_u32 v7, 512, v7
    v_cmp_gt_u32 vcc, 8, v3
    v_cndmask_b32 v10, v7, v6, vcc
    v_lshlrev_b32 v7, 7, v3
    v_add_u32 v7, 1024, v7
    v_min_u32 v12, 2176, v7
    v_lshlrev_b32 v6, 2, v3
    v_add_u32 v6, s26, v6
    ds_write_b32 v6, v8 offset:6656
    ds_write_b32 v6, v10 offset:6720
    ds_write_b32 v6, v12 offset:6784
    v_cvt_f32_u32 v8, v8
    v_cvt_f32_u32 v10, v10
    v_cvt_f32_u32 v12, v12
    v_mov_b32 v9, v8
    v_mov_b32 v11, v10
    v_mov_b32 v13, v12
    v_lshlrev_b32 v14, 3, v3
    v_cvt_f32_u32 v14, v14
    v_mov_b32 v15, v14
    v_lshlrev_b32 v7, 6, v4
    v_add_u32 v7, s26, v7
    """)
    PR = 16; AH = 64; BH = 88; AC = 96
    M = range(4)
    def evals(pf, TMP):
        for m in M: a(f"v_pk_mul_f32 v[{TMP+4*m}:{TMP+4*m+1}], v[{PR+4*m}:{PR+4*m+1}], v[{pf}:{pf+1}]")
        for m in M: a(f"v_fract_f32 v{TMP+4*m+1}, v{TMP+4*m+1}")
        for m in M: a(f"v_exp_f32 v{TMP+4*m}, v{TMP+4*m}")
        for m in M: a(f"v_cos_f32 v{TMP+4*m+2}, v{TMP+4*m+1}")
        for m in M: a(f"v_sin_f32 v{TMP+4*m+3}, v{TMP+4*m+1}")
        for m in M: a(f"v_pk_mul_f32 v[{TMP+4*m+2}:{TMP+4*m+3}], v[{TMP+4*m+2}:{TMP+4*m+3}], v[{TMP+4*m}:{TMP+4*m+1}] op_sel_hi:[1,0]")
    for i in range(12): a(f"v_mov_b32 v{AC+i}, 0")
    a("s_mov_b32 s21, 0\ns_waitcnt lgkmcnt(0)")
    a.label("L_kg_loop")
    for m in M:
        a(f"ds_read_b128 v[{PR+4*m}:{PR+4*m+3}], v7 offset:{16*m}")
    a("v_add_u32 v7, 256, v7\ns_waitcnt lgkmcnt(0)")
    T0, T1 = 32, 48
    evals(14, T0)
    for m in M: a(f"v_pk_mul_f32 v[{T0+4*m}:{T0+4*m+1}], v[{T0+4*m+2}:{T0+4*m+3}], v[{PR+4*m+2}:{PR+4*m+3}] op_sel_hi:[1,0] neg_hi:[0,1]")
    for m in M: a(f"v_pk_fma_f32 v[{T0+4*m}:{T0+4*m+1}], v[{T0+4*m+2}:{T0+4*m+3}], v[{PR+4*m+2}:{PR+4*m+3}], v[{T0+4*m}:{T0+4*m+1}] op_sel:[1,1,0] op_sel_hi:[0,1,1] neg_lo:[0,1,0] neg_hi:[0,1,0]")
    for m in M: a(f"v_cvt_pk_f16_f32 v{BH+m}, v{T0+4*m}, v{T0+4*m+1}")
    for T in range(3):
        TMP = T1 if T % 2 == 0 else T0
        evals(8 + 2 * T, TMP)
        for m in M: a(f"v_cvt_pk_f16_f32 v{AH+4*T+m}, v{TMP+4*m+2}, v{TMP+4*m+3}")
        C = f"v[{AC+4*T}:{AC+4*T+3}]"
        a(f"v_mfma_f32_16x16x32_f16 {C}, v[{AH+4*T}:{AH+4*T+3}], v[{BH}:{BH+3}], {C}")
    a("s_add_u32 s21, s21, 1\ns_cmp_lt_u32 s21, 8\ns_cbranch_scc1 L_kg_loop")
    st.stamp()
    a(f"""
    s_mov_b32 s44, s38
    s_mov_b32 s45, s39
    s_mov_b32 s46, 0x400000
    s_and_b32 s23, s16, 31
    s_lshl_b32 s23, s23, 6           ; l0
    s_lshr_b32 s24, s16, 5
    s_lshl_b32 s24, s24, 7
    s_lshl_b32 s20, s22, 5
    s_add_u32 s24, s24, s20          ; d0
    v_lshrrev_b32 v2, 2, v1
    v_and_b32 v5, 3, v1
    v_add_u32 v2, s23, v2
    v_lshlrev_b32 v2, 11, v2
    v_lshlrev_b32 v5, 4, v5
    v_add_u32 v2, v2, v5
    s_lshl_b32 s20, s24, 1
    v_add_u32 v2, s20, v2
    s_mov_b32 s20, 32768
    s_mov_b32 s21, 65536
    s_mov_b32 s27, 98304
    buffer_load_dwordx4 v[112:115], v2, s[44:47], 0 offen
    buffer_load_dwordx4 v[116:119], v2, s[44:47], s20 offen
    buffer_load_dwordx4 v[120:123], v2, s[44:47], s21 offen
    buffer_load_dwordx4 v[124:127], v2, s[44:47], s27 offen
    s_mov_b32 s44, s36
    s_mov_b32 s45, s37
    s_mov_b32 s46, 0x200000
    s_lshl_b32 s20, s16, 13
    s_lshl_b32 s21, s22, 11
    s_add_u32 s20, s20, s21
    v_and_b32 v2, 15, v1
    v_lshlrev_b32 v2, 7, v2
    buffer_load_dword v221, v2, s[44:47], s20 offen
    """)
    a(f"""
    v_lshlrev_b32 v6, 4, v4
    v_add_u32 v6, s26, v6
    ds_read_b128 v[16:19], v6 offset:6656
    ds_read_b128 v[20:23], v6 offset:6720
    ds_read_b128 v[24:27], v6 offset:6784
    s_add_u32 s3, s26, 2048
    v_lshlrev_b32 v5, 4, v3
    v_add_u32 v5, s3, v5
    """)
    for i in range(12): a(f"v_mul_f32 v{AC+i}, v111, v{AC+i}")
    a("s_waitcnt lgkmcnt(0)")
    for i in range(12):
        a(f"v_lshl_add_u32 v{16+i}, v{16+i}, 1, v5")
    for i in range(0, 12, 2):
        a(f"v_cvt_pk_bf16_f32 v{32+i}, v{AC+i}, v{AC+i+1}")
    for i in range(0, 12, 2):
        a(f"ds_write_b16 v{16+i}, v{32+i}")
        a(f"ds_write_b16_d16_hi v{16+i+1}, v{32+i}")
    a(f"""
    v_lshlrev_b32 v2, 3, v1
    v_cvt_f32_u32 v2, v2
    v_lshlrev_b32 v3, 4, v1
    s_lshl_b32 s28, s25, 12
    s_add_u32 s28, s28, {WS_KT}
    s_mov_b32 s30, 0xffff0000
    """)
    for i in range(4):
        B = 128 + 16 * i
        for jp in range(4):
            t = B + 4 * jp
            a(f"v_add_f32 v{t}, {float(512*i + 2*jp)!r}, v2\nv_add_f32 v{t+1}, {float(512*i + 2*jp + 1)!r}, v2")
        for jp in range(4):
            t = B + 4 * jp
            a(f"v_cvt_pk_bf16_f32 v{t}, v{t}, v{t+1}")
        for jp in range(4):
            t = B + 4 * jp
            a(f"v_and_b32 v{t+1}, 0xffff0000, v{t}\nv_lshlrev_b32 v{t}, 16, v{t}")
        for jp in range(4):
            t = B + 4 * jp
            a(f"v_cvt_u32_f32 v{t}, v{t}\nv_cvt_u32_f32 v{t+1}, v{t+1}")
        for jp in range(4):
            t = B + 4 * jp
            a(f"v_lshl_add_u32 v{t}, v{t}, 1, s3\nv_lshl_add_u32 v{t+1}, v{t+1}, 1, s3")
    a("s_waitcnt lgkmcnt(0)")
    for i in range(4):
        B = 128 + 16 * i
        o = 32 + 4 * i
        for jp in range(4):
            t = B + 4 * jp
            a(f"ds_read_u16 v{o+jp}, v{t}\nds_read_u16_d16_hi v{o+16+jp}, v{t+1}")
    a("s_waitcnt lgkmcnt(0)")
    for i in range(16):
        a(f"v_and_or_b32 v{32+i}, v{48+i}, s30, v{32+i}")
    for i in range(4):
        a(f"buffer_store_dwordx4 v[{32+4*i}:{35+4*i}], v3, s[12:15], s28 offen offset:{1024*i}")
    st.stamp()
    a(f"""
    v_lshrrev_b32 v2, 2, v1
    v_and_b32 v3, 3, v1
    v_mul_u32_u24 v6, {TP}, v2
    v_lshlrev_b32 v3, 4, v3
    v_add3_u32 v6, v6, v3, s26
    s_waitcnt vmcnt(4)
    ds_write_b128 v6, v[112:115]
    ds_write_b128 v6, v[116:119] offset:{16*TP}
    ds_write_b128 v6, v[120:123] offset:{32*TP}
    ds_write_b128 v6, v[124:127] offset:{48*TP}
    v_and_b32 v2, 15, v1
    v_lshrrev_b32 v3, 2, v2
    v_and_b32 v4, 3, v2
    v_lshrrev_b32 v5, 4, v1
    v_lshlrev_b32 v6, 3, v5
    v_add_u32 v6, v6, v3
    v_sub_u32 v6, 27, v6
    v_mul_u32_u24 v6, {TP}, v6
    v_lshlrev_b32 v4, 3, v4
    v_add3_u32 v6, v6, v4, s26
    s_waitcnt lgkmcnt(0)
    """)
    for cg in range(2):
        for lh in range(2):
            for h in range(2):
                off = (32 * (1 - lh) + 4 * (1 - h)) * TP + 32 * cg
                reg = 16 + 4 * (2 * cg + lh) + 2 * h
                a(f"ds_read_b64_tr_b16 v[{reg}:{reg+1}], v6 offset:{off}")
    a(f"""
    v_add_u32 v2, s24, v2
    v_lshlrev_b32 v2, 12, v2
    v_lshlrev_b32 v5, 4, v5
    v_add_u32 v2, v2, v5
    s_sub_u32 s20, 1984, s23
    s_lshl_b32 s20, s20, 1
    s_add_u32 s20, s20, {WS_UT}
    s_add_u32 s21, s20, 65536
    s_waitcnt lgkmcnt(0)
    buffer_store_dwordx4 v[16:19], v2, s[12:15], s20 offen
    buffer_store_dwordx4 v[20:23], v2, s[12:15], s20 offen offset:64
    buffer_store_dwordx4 v[24:27], v2, s[12:15], s21 offen
    buffer_store_dwordx4 v[28:31], v2, s[12:15], s21 offen offset:64
    """)
    st.stamp(); st.dump(22)
    a("s_endpgm")

def gemm(a, st):
    ACC = 16
    AF = 112
    BF = [144, 156]
    a(f"""
    s_setprio {os.environ.get('GPRIO','0')}
    s_and_b32 s16, s2, 7             ; xcd
    s_lshr_b32 s17, s2, 3            ; idx
    s_and_b32 s18, s16, 1
    s_lshl_b32 s18, s18, 3
    s_and_b32 s19, s17, 7
    s_add_u32 s18, s18, s19          ; rb
    s_lshr_b32 s19, s16, 1
    s_lshl_b32 s19, s19, 2
    s_lshr_b32 s20, s17, 3
    s_add_u32 s19, s19, s20          ; cb
    s_mov_b32 s4, s32
    s_mov_b32 s5, s33
    s_mov_b32 s6, 0x400000
    s_mov_b32 s7, 0x00020000
    s_mov_b32 s8, s34
    s_mov_b32 s9, s35
    s_mov_b32 s10, 0x600000
    s_mov_b32 s11, 0x00020000
    s_and_b32 s20, s22, 1
    s_cmp_eq_u32 s20, 0
    s_cselect_b32 s84, s32, s34
    s_cselect_b32 s85, s33, s35
    s_cselect_b32 s86, 0x400000, s10
    s_mov_b32 s87, 0x00020000
    s_mov_b32 s21, {128*6144}
    s_cselect_b32 s89, 256, s21
    s_and_b32 s20, s16, 1
    s_lshl_b32 s20, s20, 10
    s_lshl_b32 s21, s17, 5
    s_add_u32 s20, s20, s21
    v_and_b32 v9, 31, v1
    v_add_u32 v9, s20, v9
    v_lshlrev_b32 v9, 11, v9
    v_lshrrev_b32 v10, 5, v1
    v_lshlrev_b32 v10, 7, v10
    v_add_u32 v9, v9, v10
    s_lshl_b32 s20, s17, 2
    v_lshrrev_b32 v10, 4, v1
    v_add_u32 v10, s20, v10
    v_mul_u32_u24 v10, 6144, v10
    v_and_b32 v11, 15, v1
    v_min_u32 v11, 11, v11
    v_lshrrev_b32 v12, 2, v11
    v_lshlrev_b32 v12, 11, v12
    v_and_b32 v11, 3, v11
    v_lshlrev_b32 v11, 7, v11
    v_add3_u32 v10, v10, v11, v12
    s_lshr_b32 s20, s16, 1
    s_lshl_b32 s20, s20, 9
    v_add_u32 v10, s20, v10
    s_and_b32 s20, s22, 1
    v_cmp_eq_u32 vcc, 0, s20
    v_cndmask_b32 v219, v10, v9, vcc
    s_mov_b32 s88, 0
    s_lshl_b32 s20, s18, 7
    s_lshl_b32 s21, s22, 5
    s_add_u32 s20, s20, s21
    v_lshrrev_b32 v2, 3, v1
    v_add_u32 v2, s20, v2
    v_lshlrev_b32 v2, 11, v2
    v_and_b32 v3, 7, v1
    v_lshrrev_b32 v4, 4, v1
    v_xor_b32 v3, v3, v4
    v_lshlrev_b32 v3, 4, v3
    v_add_u32 v216, v2, v3
    v_xor_b32 v3, 64, v3
    v_add_u32 v217, v2, v3
    v_add_u32 v217, 16384, v217
    s_lshl_b32 s20, s22, 3
    v_lshrrev_b32 v3, 3, v1
    v_add_u32 v3, s20, v3
    v_mul_u32_u24 v3, 6144, v3
    s_lshl_b32 s20, s19, 7
    v_add_u32 v3, s20, v3
    v_and_b32 v4, 7, v1
    v_lshrrev_b32 v5, 4, v1
    v_and_b32 v5, 1, v5
    v_lshlrev_b32 v5, 2, v5
    v_xor_b32 v4, v4, v5
    v_lshlrev_b32 v4, 4, v4
    v_add_u32 v218, v3, v4
    s_lshl_b32 s62, s22, 12          ; A m0 base
    s_lshl_b32 s63, s22, 10
    s_add_u32 s63, s63, {BB}         ; B m0 base
    s_mov_b32 s27, 0
    s_mov_b32 s28, 0
    """)
    def dmaA(slot):
        o = slot * 16384
        return [
            f"s_add_u32 m0, s62, {o}\ns_add_u32 s31, s27, 32768\nbuffer_load_dwordx4 v216, s[4:7], s27 offen lds",
            f"s_add_u32 m0, s62, {o+1024}\ns_nop 0\nbuffer_load_dwordx4 v217, s[4:7], s27 offen lds",
            f"s_add_u32 m0, s62, {o+2048}\ns_nop 0\nbuffer_load_dwordx4 v216, s[4:7], s31 offen lds",
            f"s_add_u32 m0, s62, {o+3072}\ns_add_u32 s27, s27, 128\nbuffer_load_dwordx4 v217, s[4:7], s31 offen lds\ns_cmp_lt_u32 s27, 2048\ns_cselect_b32 s27, s27, 0x10000000",
        ]
    def dmaB(slot):
        o = slot * BS
        return [
            f"s_add_u32 m0, s63, {o}\ns_add_u32 s30, s28, 2048\nbuffer_load_dwordx4 v218, s[8:11], s28 offen lds",
            f"s_add_u32 m0, s63, {o+4096}\ns_add_u32 s31, s28, 4096\nbuffer_load_dwordx4 v218, s[8:11], s30 offen lds",
            f"s_add_u32 m0, s63, {o+8192}\ns_add_u32 s28, s28, 196608\nbuffer_load_dwordx4 v218, s[8:11], s31 offen lds",
        ]
    PF = "buffer_load_dword v220, v219, s[84:87], s88 offen\ns_add_u32 s88, s88, s89"
    for d in dmaA(0) + dmaB(0) + [PF] * NPF + dmaB(1) + dmaB(2) + dmaA(1): a(d)
    a(f"""
    s_and_b32 s23, s22, 1            ; rh
    s_lshr_b32 s24, s22, 1           ; hs
    v_and_b32 v10, 31, v1
    v_lshrrev_b32 v11, 5, v1
    s_lshl_b32 s20, s23, 6
    v_add_u32 v12, s20, v10
    v_lshlrev_b32 v12, 7, v12
    v_lshrrev_b32 v13, 1, v10
    v_and_b32 v13, 7, v13
    v_xor_b32 v14, v11, v13
    v_lshlrev_b32 v14, 4, v14
    v_add_u32 v4, v12, v14
    v_xor_b32 v5, 32, v4
    v_xor_b32 v6, 64, v4
    v_xor_b32 v7, 96, v4
    v_lshrrev_b32 v10, 5, v1
    v_lshlrev_b32 v10, 3, v10
    v_and_b32 v11, 15, v1
    v_lshrrev_b32 v11, 2, v11
    v_add_u32 v10, v10, v11
    v_lshlrev_b32 v10, 7, v10
    v_lshrrev_b32 v12, 4, v1
    v_and_b32 v12, 1, v12
    v_lshlrev_b32 v12, 1, v12
    v_and_b32 v13, 3, v1
    v_lshrrev_b32 v14, 1, v13
    v_add_u32 v12, v12, v14
    s_lshl_b32 s20, s24, 2
    v_add_u32 v12, s20, v12
    v_lshrrev_b32 v11, 1, v11
    v_and_b32 v11, 1, v11
    v_lshlrev_b32 v11, 2, v11
    v_xor_b32 v12, v12, v11
    v_lshlrev_b32 v12, 4, v12
    v_add_u32 v10, v10, v12
    v_and_b32 v13, 1, v13
    v_lshlrev_b32 v13, 3, v13
    v_add_u32 v10, v10, v13
    v_add_u32 v8, {BB}, v10
    """)
    for i in range(96): a(f"v_mov_b32 v{ACC+i}, 0")
    def readsA(aslot, t):
        F = AF + 8 * t
        return [f"ds_read_b128 v[{F+4*mb}:{F+4*mb+3}], v{4+t} offset:{aslot*16384 + 4096*mb}" for mb in range(2)]
    def readsB(F, bslot, ks):
        out = []
        for s in range(3):
            for h in range(2):
                off = bslot * BS + s * 4096 + (16 * ks + 4 * h) * 128
                out.append(f"ds_read_b64_tr_b16 v[{F+4*s+2*h}:{F+4*s+2*h+1}], v8 offset:{off}")
        return out
    def mfmas(t, FB):
        out = []
        for mb in range(2):
            A = f"v[{AF+8*t+4*mb}:{AF+8*t+4*mb+3}]"
            for j in range(3):
                B = f"v[{FB+4*j}:{FB+4*j+3}]"
                c = ACC + 16 * (3 * mb + j)
                C = f"v[{c}:{c+15}]"
                if j == 0: out.append(f"v_mfma_f32_32x32x16_bf16 {C}, {B}, {A}, {C}")
                else: out.append(f"v_mfma_f32_32x32x16_bf16 {C}, {A}, {B}, {C}")
        return out
    def interleave(ms, others):
        n = len(others); k = 0
        per = [3, 3, 3, 2, 2, 2]
        for i, m in enumerate(ms):
            a(m)
            for _ in range(per[i]):
                if k < n: a(others[k]); k += 1
        while k < n: a(others[k]); k += 1
    a(f"s_waitcnt vmcnt({10+NPF})\ns_barrier")
    st.stamp()
    for r in readsA(0, 0) + readsB(BF[0], 0, 0): a(r)
    a("s_mov_b32 s3, 0")
    a.label("L_g1_loop")
    for jj in range(2):
        asl = jj
        b0, b1 = 2 * jj, 2 * jj + 1
        a(f"s_waitcnt vmcnt({7 if jj == 0 else 8}) lgkmcnt(0)\ns_barrier")
        interleave(mfmas(0, BF[0]), readsB(BF[1], b0, 1) + readsA(asl, 1) + readsA(asl, 2) + readsA(asl, 3) + dmaB((b0 + 3) % 4) + ([PF] if jj == 0 else []))
        a("s_waitcnt lgkmcnt(0)")
        interleave(mfmas(1, BF[1]), readsB(BF[0], b1, 0))
        a(f"s_waitcnt vmcnt({4 if jj == 0 else 3}) lgkmcnt(0)\ns_barrier")
        interleave(mfmas(2, BF[0]), readsB(BF[1], b1, 1) + dmaB((b1 + 3) % 4) + dmaA(asl)[0:2])
        a("s_waitcnt lgkmcnt(0)")
        interleave(mfmas(3, BF[1]), readsB(BF[0], (b1 + 1) % 4, 0) + readsA(1 - asl, 0) + dmaA(asl)[2:4])
    a("s_add_u32 s3, s3, 1\ns_cmp_lt_u32 s3, 8\ns_cbranch_scc1 L_g1_loop")
    a("s_waitcnt vmcnt(0) lgkmcnt(0)")
    st.stamp()
    a("""
    s_mov_b32 s40, 0x3fb8aa3b
    s_mov_b32 s41, 0x3fb8aa3b
    s_mov_b32 s42, 0x358637bd
    s_mov_b32 s43, 0x358637bd
    s_lshl_b32 s44, s19, 1
    s_add_u32 s44, s44, s24
    v_lshlrev_b32 v10, 4, v1
    v_mov_b32 v12, 0x3f803f80
    v_mov_b32 v13, 0x3f803f80
    v_mov_b32 v14, 0x3f803f80
    v_mov_b32 v15, 0x3f803f80
    """)
    T = 152; PK = 160; KV = 112; ZA = 128
    def phi(src, dst):
        for p in range(8):
            x = src + 2 * p
            t = T + 4 * (p % 2)
            a(f"""
            v_pk_mul_f32 v[{t}:{t+1}], v[{x}:{x+1}], s[40:41]
            v_max_f32 v{t+2}, 0, v{x}
            v_max_f32 v{t+3}, 0, v{x+1}
            v_exp_f32_e64 v{t}, v{t} clamp
            v_exp_f32_e64 v{t+1}, v{t+1} clamp
            v_pk_add_f32 v[{t+2}:{t+3}], v[{t+2}:{t+3}], s[42:43]
            v_pk_add_f32 v[{t}:{t+1}], v[{t}:{t+1}], v[{t+2}:{t+3}]
            v_cvt_pk_bf16_f32 v{dst+p}, v{t}, v{t+1}
            """)
    for mb in range(2):
        q, k, v = (ACC + 16 * (3 * mb + j) for j in range(3))
        phi(k, PK)
        for p in range(8):
            a(f"v_cvt_pk_bf16_f32 v{PK+8+p}, v{v+2*p}, v{v+2*p+1}")
        for t in range(2):
            c = "0" if (mb == 0 and t == 0) else None
            Ckv = f"v[{KV}:{KV+15}]"; Cz = f"v[{ZA}:{ZA+15}]"
            a(f"v_mfma_f32_32x32x16_bf16 {Ckv}, v[{PK+4*t}:{PK+4*t+3}], v[{PK+8+4*t}:{PK+8+4*t+3}], {c or Ckv}")
            a(f"v_mfma_f32_32x32x16_bf16 {Cz}, v[{PK+4*t}:{PK+4*t+3}], v[12:15], {c or Cz}")
        phi(q, PK + 16)
        a(f"""
        s_lshl_b32 s45, s18, 2
        s_lshl_b32 s46, s23, 1
        s_add_u32 s45, s45, s46
        s_add_u32 s45, s45, {mb}
        s_lshl_b32 s45, s45, 5
        s_add_u32 s45, s45, s44
        s_lshl_b32 s45, s45, 11
        s_add_u32 s45, s45, {WS_PQ}
        buffer_store_dwordx4 v[{PK+16}:{PK+19}], v10, s[12:15], s45 offen
        buffer_store_dwordx4 v[{PK+20}:{PK+23}], v10, s[12:15], s45 offen offset:1024
        """)
    st.stamp()
    a("s_barrier")
    a(f"""
    s_lshl_b32 s45, s24, 13
    v_add_u32 v11, s45, v10
    s_cmp_eq_u32 s23, 0
    s_cbranch_scc1 L_g1_red_wait
    """)
    for j in range(4):
        a(f"ds_write_b128 v11, v[{KV+4*j}:{KV+4*j+3}] offset:{1024*j}")
    for j in range(4):
        a(f"ds_write_b128 v11, v[{ZA+4*j}:{ZA+4*j+3}] offset:{4096+1024*j}")
    a("s_waitcnt lgkmcnt(0)\ns_barrier")
    st.dump(22)
    a("s_endpgm")
    a.label("L_g1_red_wait")
    a("s_barrier")
    for j in range(8):
        a(f"ds_read_b128 v[{ACC+4*j}:{ACC+4*j+3}], v11 offset:{1024*j}")
    a("s_waitcnt lgkmcnt(0)")
    for j in range(16):
        a(f"v_pk_add_f32 v[{KV+2*j}:{KV+2*j+1}], v[{KV+2*j}:{KV+2*j+1}], v[{ACC+2*j}:{ACC+2*j+1}]")
    a(f"""
    s_lshl_b32 s45, s44, 4
    s_add_u32 s45, s45, s18
    s_lshl_b32 s46, s45, 12
    s_add_u32 s46, s46, {WS_KVP}
    s_lshl_b32 s47, s45, 7
    s_add_u32 s47, s47, {WS_ZP}
    """)
    for j in range(4):
        a(f"buffer_store_dwordx4 v[{KV+4*j}:{KV+4*j+3}], v10, s[12:15], s46 offen offset:{1024*j}")
    a("""
    v_and_b32 v11, 31, v1
    v_lshlrev_b32 v12, 1, v1
    v_cmp_eq_u32 vcc, 0, v11
    s_and_saveexec_b64 s[48:49], vcc
    """)
    for j in range(4):
        a(f"buffer_store_dwordx4 v[{ZA+4*j}:{ZA+4*j+3}], v12, s[12:15], s47 offen offset:{16*j}")
    st.stamp(); st.dump(22)
    a("s_endpgm")
```

```python
from asmlib import Asm
from layout import *
from stamps import Stamps

CS = 4288
KP = 4 * CS
WR = KP + 4608 + 64

def gen(a: Asm):
    a(f"""
    s_cmp_ge_u32 s2, 256
    s_cbranch_scc1 L_k2_end
    s_load_dwordx2 s[36:37], s[0:1], 96      ; ws
    s_load_dwordx2 s[38:39], s[0:1], 72      ; D_skip
    v_and_b32 v1, 63, v0
    v_lshrrev_b32 v2, 6, v0
    s_nop 0
    v_readfirstlane_b32 s22, v2
    s_waitcnt lgkmcnt(0)
    s_mov_b32 s12, s36
    s_mov_b32 s13, s37
    s_mov_b32 s14, 0x10000000
    s_mov_b32 s15, 0x00020000
    s_cmp_eq_u32 s22, 4
    s_cbranch_scc1 L_k2_otask
    """)
    conv(a)
    a.label("L_k2_otask")
    otask(a)
    a.label("L_k2_end")
    a("s_endpgm")
    return dict(vgpr=192, block=320, lds=4 * WR + 65536 + 2048 + 128)

def conv(a, end=True):
    ACC = 16; S0 = 48; S1 = 120
    st = Stamps(a, 1); st.stamp()
    a(f"""
    s_lshl_b32 s23, s2, 2
    s_add_u32 s23, s23, s22          ; channel d
    s_mul_i32 s26, s22, {WR}
    s_lshl_b32 s24, s23, 12          ; d*4096
    s_add_u32 s4, s36, s24
    s_addc_u32 s5, s37, 0
    s_add_u32 s4, s4, {WS_UT}
    s_addc_u32 s5, s5, 0
    s_mov_b32 s6, 4096
    s_mov_b32 s7, 0x00020000
    v_lshlrev_b32 v2, 4, v1          ; lane*16
    """)
    for it in range(4):
        b = S0 + 12 * it
        a(f"""
        buffer_load_dwordx4 v[{b}:{b+3}], v2, s[4:7], 0 offen offset:{1024*it}
        buffer_load_dwordx4 v[{b+4}:{b+7}], v2, s[4:7], 0 offen offset:{1024*it+4}
        buffer_load_dwordx2 v[{b+8}:{b+9}], v2, s[4:7], 0 offen offset:{1024*it+16}
        """)
    a(f"""
    s_add_u32 s27, s24, {WS_KT}
    s_add_u32 s28, s26, {KP+512}
    """)
    for i in range(4):
        a(f"""
        s_add_u32 m0, s28, {1024*i}
        s_add_u32 s29, s27, {1024*i}
        buffer_load_dwordx4 v2, s[12:15], s29 offen lds
        """)
    a(f"""
    s_mov_b32 s8, s38
    s_mov_b32 s9, s39
    s_mov_b32 s10, 2048
    s_mov_b32 s11, 0x00020000
    s_lshl_b32 s25, s23, 1
    v_mov_b32 v3, s25
    buffer_load_ushort v14, v3, s[8:11], 0 offen
    v_mov_b32 v4, 0
    v_mov_b32 v5, 0
    v_mov_b32 v6, 0
    v_mov_b32 v7, 0
    v_lshlrev_b32 v3, 3, v1
    v_add_u32 v3, s26, v3
    ds_write_b64 v3, v[4:5] offset:{KP}
    v_and_b32 v8, 7, v1
    v_lshlrev_b32 v8, 3, v8
    v_add_u32 v8, s26, v8
    ds_write_b64 v8, v[4:5] offset:{KP+4608}
    v_and_b32 v3, 31, v1
    v_lshrrev_b32 v8, 3, v3          ; s
    v_and_b32 v3, 7, v3              ; j
    v_add_u32 v9, 256, v3
    v_cmp_gt_u32 vcc, 2, v3
    v_cndmask_b32 v3, v9, v3, vcc
    v_lshlrev_b32 v3, 4, v3
    v_mul_u32_u24 v8, {CS}, v8
    v_add3_u32 v3, v3, v8, s26
    ds_write_b128 v3, v[4:7]
    v_add_u32 v3, s26, v2
    """)
    E = 100
    for it in range(4):
        b = S0 + 12 * it
        e = E + 8 * (it % 2)
        a(f"s_waitcnt vmcnt({17 - 3*(it+1)})")
        d = [b, b + 1, b + 2, b + 3, b + 8, b + 9]
        for k in range(4):
            a(f"v_alignbyte_b32 v{e+k}, v{d[k+1]}, v{d[k]}, 2")
        for k in range(4):
            a(f"v_alignbyte_b32 v{e+4+k}, v{d[k+2]}, v{d[k+1]}, 2")
        o = 32 + 1024 * it
        a(f"""
        ds_write_b128 v3, v[{b}:{b+3}] offset:{o}
        ds_write_b128 v3, v[{e}:{e+3}] offset:{CS+o}
        ds_write_b128 v3, v[{b+4}:{b+7}] offset:{2*CS+o}
        ds_write_b128 v3, v[{e+4}:{e+7}] offset:{3*CS+o}
        """)
    a(f"""
    v_and_b32 v4, 15, v1             ; b / a
    v_lshrrev_b32 v5, 4, v1          ; kg / g
    v_sub_u32 v6, 3, v4
    v_and_b32 v6, 3, v6              ; s
    v_mul_u32_u24 v6, {CS}, v6
    v_lshrrev_b32 v7, 2, v4
    v_lshlrev_b32 v7, 3, v7          ; 2*4*(b>>2)
    v_lshlrev_b32 v8, 4, v5          ; 2*8*kg
    v_add_u32 v6, v6, v8
    v_sub_u32 v6, v6, v7
    v_add_u32 v6, 24, v6
    v_add_u32 v6, s26, v6            ; A base
    v_lshlrev_b32 v7, 5, v4
    v_add3_u32 v7, v7, v8, s26
    v_add_u32 v7, {KP}, v7           ; B base
    """)
    for i in range(32): a(f"v_mov_b32 v{ACC+i}, 0")
    a("s_waitcnt vmcnt(0) lgkmcnt(0)")
    st.stamp()
    def reads(S, rho):
        out = []
        ii = range(9) if rho == 0 else range(8)
        ww = range(-1, 8) if rho == 0 else range(8)
        ra, rb = [], []
        for i in ii:
            q = rho + 8 * i
            off = 64 * (64 - q)
            ra.append([f"ds_read_b64 v[{S+4*i}:{S+4*i+1}], v6 offset:{off}", f"ds_read_b64 v[{S+4*i+2}:{S+4*i+3}], v6 offset:{off+8}"])
        for w in ww:
            r = 8 * w - rho
            rb.append([f"ds_read_b128 v[{S+36+4*(w+1)}:{S+36+4*(w+1)+3}], v7 offset:{64*(r+8)}"])
        for x, y in zip(ra, rb):
            out += y + x
        return out
    def mfmas(S, rho):
        out = []
        ii = range(9) if rho == 0 else range(8)
        ww = range(-1, 8) if rho == 0 else range(8)
        for i in ii:
            for w in ww:
                t = i + w
                if 0 <= t <= 7:
                    C = f"v[{ACC+4*t}:{ACC+4*t+3}]"
                    out.append(f"v_mfma_f32_16x16x32_bf16 {C}, v[{S+4*i}:{S+4*i+3}], v[{S+36+4*(w+1)}:{S+36+4*(w+1)+3}], {C}")
        return out
    for r in reads(S0, 0): a(r)
    for rho in range(8):
        S = S0 if rho % 2 == 0 else S1
        Sn = S1 if rho % 2 == 0 else S0
        a("s_waitcnt lgkmcnt(0)")
        ms = mfmas(S, rho)
        rd = reads(Sn, rho + 1) if rho < 7 else []
        k = 0
        for m in ms:
            a(m)
            if k < len(rd): a(rd[k]); k += 1
        while k < len(rd): a(rd[k]); k += 1
    st.stamp()
    a(f"""
    v_lshlrev_b32 v8, 5, v4          ; 32a
    v_lshlrev_b32 v9, 3, v5          ; 8g
    v_add_u32 v8, v8, v9
    v_sub_u32 v9, {2*(2060-1792)}, v8
    v_add_u32 v9, s26, v9
    v_lshlrev_b32 v14, 16, v14
    v_mov_b32 v15, v14
    s_add_u32 s27, s24, {WS_YT}
    s_mov_b32 s30, 0xffff0000
    """)
    U = 48
    for t in range(8):
        a(f"ds_read_b64 v[{U+2*t}:{U+2*t+1}], v9 offset:{512*(7-t)}")
    a("s_waitcnt lgkmcnt(0)")
    for t in range(8):
        T = 64 + 16 * (t % 4)
        y = ACC + 4 * t
        u0, u1 = U + 2 * t, U + 2 * t + 1
        a(f"""
        v_and_b32 v{T}, s30, v{u1}
        v_lshlrev_b32 v{T+1}, 16, v{u1}
        v_and_b32 v{T+2}, s30, v{u0}
        v_lshlrev_b32 v{T+3}, 16, v{u0}
        v_cvt_pk_bf16_f32 v{T+8}, v{y}, v{y+1}
        v_cvt_pk_bf16_f32 v{T+9}, v{y+2}, v{y+3}
        v_pk_mul_f32 v[{T}:{T+1}], v[{T}:{T+1}], v[14:15]
        v_pk_mul_f32 v[{T+2}:{T+3}], v[{T+2}:{T+3}], v[14:15]
        v_lshlrev_b32 v{T+4}, 16, v{T+8}
        v_and_b32 v{T+5}, s30, v{T+8}
        v_lshlrev_b32 v{T+6}, 16, v{T+9}
        v_and_b32 v{T+7}, s30, v{T+9}
        v_cvt_pk_bf16_f32 v{T+8}, v{T}, v{T+1}
        v_cvt_pk_bf16_f32 v{T+9}, v{T+2}, v{T+3}
        v_lshlrev_b32 v{T}, 16, v{T+8}
        v_and_b32 v{T+1}, s30, v{T+8}
        v_lshlrev_b32 v{T+2}, 16, v{T+9}
        v_and_b32 v{T+3}, s30, v{T+9}
        v_pk_add_f32 v[{T}:{T+1}], v[{T}:{T+1}], v[{T+4}:{T+5}]
        v_pk_add_f32 v[{T+2}:{T+3}], v[{T+2}:{T+3}], v[{T+6}:{T+7}]
        v_cvt_pk_bf16_f32 v{T+10}, v{T}, v{T+1}
        v_cvt_pk_bf16_f32 v{T+11}, v{T+2}, v{T+3}
        buffer_store_dwordx2 v[{T+10}:{T+11}], v8, s[12:15], s27 offen offset:{512*t}
        """)
    st.stamp(); st.dump(22, 188)
    if end: a("s_endpgm")

def otask(a, end=True, after_sum=None):
    PB = 4 * WR
    KV = 16
    T = 32
    PQ = 112
    st = Stamps(a, 1); st.stamp()
    a(f"""
    s_setprio 3
    s_and_b32 s23, s2, 31            ; head
    s_lshr_b32 s24, s2, 5
    v_lshlrev_b32 v2, 4, v1          ; lane*16
    s_lshl_b32 s25, s23, 16
    s_add_u32 s25, s25, {WS_KVP}
    s_lshl_b32 s26, s23, 11
    s_add_u32 s26, s26, {WS_ZP}
    s_lshl_b32 s27, s24, 8
    s_add_u32 s27, s27, s23
    s_lshl_b32 s27, s27, 11
    s_add_u32 s28, s27, {WS_PQ}
    s_add_u32 s29, s27, {WS_O}
    s_mov_b32 m0, {PB+65536}
    s_add_u32 s30, s26, 1024
    buffer_load_dwordx4 v2, s[12:15], s26 offen lds
    s_mov_b32 m0, {PB+65536+1024}
    s_nop 0
    buffer_load_dwordx4 v2, s[12:15], s30 offen lds
    s_mov_b32 s31, {PB}
    s_mov_b32 s3, 0
    """)
    a.label("L_o_dma")
    for j in range(4):
        a(f"""
        s_add_u32 m0, s31, {1024*j}
        s_add_u32 s30, s25, {1024*j}
        buffer_load_dwordx4 v2, s[12:15], s30 offen lds
        """)
    a("s_add_u32 s31, s31, 4096\ns_add_u32 s25, s25, 4096\ns_add_u32 s3, s3, 1\ns_cmp_lt_u32 s3, 16\ns_cbranch_scc1 L_o_dma")
    for r in range(8):
        a(f"""
        buffer_load_dwordx4 v[{PQ+8*r}:{PQ+8*r+3}], v2, s[12:15], s28 offen
        buffer_load_dwordx4 v[{PQ+8*r+4}:{PQ+8*r+7}], v2, s[12:15], s28 offen offset:1024
        s_add_u32 s28, s28, 65536
        """)
    a(f"""
    v_add_u32 v3, {PB}, v2
    v_lshlrev_b32 v4, 2, v1          ; l*4 = i*4 + h*128
    v_add_u32 v4, {PB+65536}, v4
    s_waitcnt vmcnt(16)
    """)
    st.stamp()
    for p in range(8):
        a(f"ds_read_b32 v{96+p}, v4 offset:{256*p}")
    for b in range(4):
        for p in range(4):
            for j in range(4):
                dst = (KV + 4 * j) if (b == 0 and p == 0) else (T + 16 * p + 4 * j)
                a(f"ds_read_b128 v[{dst}:{dst+3}], v3 offset:{(4*b+p)*4096 + 1024*j}")
        if b == 0:
            a("s_waitcnt lgkmcnt(15)")
            a(f"""
            v_add_f32 v96, v96, v97
            v_add_f32 v98, v98, v99
            v_add_f32 v100, v100, v101
            v_add_f32 v102, v102, v103
            v_add_f32 v96, v96, v98
            v_add_f32 v100, v100, v102
            v_add_f32 v96, v96, v100
            v_mov_b32 v97, v96
            s_nop 1
            v_permlane32_swap_b32 v96, v97
            s_nop 1
            v_add_f32 v96, v96, v97
            v_and_b32 v5, 31, v1
            v_lshlrev_b32 v5, 2, v5
            v_add_u32 v5, {PB+65536+2048}, v5
            """)
        a("s_waitcnt lgkmcnt(0)")
        if b == 0:
            a("ds_write_b32 v5, v96")
        for p in range(4):
            if b == 0 and p == 0: continue
            for j in range(8):
                a(f"v_pk_add_f32 v[{KV+2*j}:{KV+2*j+1}], v[{KV+2*j}:{KV+2*j+1}], v[{T+16*p+2*j}:{T+16*p+2*j+1}]")
    a(f"""
    v_lshrrev_b32 v5, 5, v1
    v_lshlrev_b32 v5, 6, v5
    v_add_u32 v5, {PB+65536+2048}, v5
    s_waitcnt lgkmcnt(0)
    ds_read_b128 v[32:35], v5
    ds_read_b128 v[36:39], v5 offset:16
    ds_read_b128 v[40:43], v5 offset:32
    ds_read_b128 v[44:47], v5 offset:48
    """)
    KA = 96
    for j in range(8):
        a(f"v_cvt_pk_bf16_f32 v{KA+j}, v{KV+2*j}, v{KV+2*j+1}")
    a("s_waitcnt lgkmcnt(0)")
    for j in range(8):
        a(f"v_cvt_pk_bf16_f32 v{KA+8+j}, v{32+2*j}, v{33+2*j}")
    a("s_mov_b32 s31, 0x358637bd\ns_waitcnt vmcnt(0)")
    if after_sum: after_sum()
    st.stamp()
    NUM = [16, 48]; DEN = [32, 64]
    def mm(r):
        p = PQ + 8 * r
        N = f"v[{NUM[r%2]}:{NUM[r%2]+15}]"; Dn = f"v[{DEN[r%2]}:{DEN[r%2]+15}]"
        return [f"v_mfma_f32_32x32x16_bf16 {Dn}, v[{KA+8}:{KA+11}], v[{p}:{p+3}], 0",
                f"v_mfma_f32_32x32x16_bf16 {N}, v[{KA}:{KA+3}], v[{p}:{p+3}], 0",
                f"v_mfma_f32_32x32x16_bf16 {Dn}, v[{KA+12}:{KA+15}], v[{p+4}:{p+7}], {Dn}",
                f"v_mfma_f32_32x32x16_bf16 {N}, v[{KA+4}:{KA+7}], v[{p+4}:{p+7}], {N}"]
    def fin(r):
        p = PQ + 8 * r; Nn = NUM[r % 2]; Dd = DEN[r % 2]
        out = [f"v_cvt_pk_bf16_f32 v4, v{Dd}, v{Dd}", "v_lshlrev_b32 v4, 16, v4", "v_add_f32 v4, s31, v4",
               "v_cvt_pk_bf16_f32 v4, v4, v4", "v_lshlrev_b32 v4, 16, v4", "v_rcp_f32 v4, v4"]
        out += [f"v_pk_mul_f32 v[{Nn+2*j}:{Nn+2*j+1}], v[{Nn+2*j}:{Nn+2*j+1}], v[4:5] op_sel_hi:[1,0]" for j in range(8)]
        out += [f"v_cvt_pk_bf16_f32 v{p+j}, v{Nn+2*j}, v{Nn+2*j+1}" for j in range(8)]
        out += [f"buffer_store_dwordx4 v[{p}:{p+3}], v2, s[12:15], s29 offen",
                f"buffer_store_dwordx4 v[{p+4}:{p+7}], v2, s[12:15], s29 offen offset:1024",
                "s_add_u32 s29, s29, 65536"]
        return out
    for m in mm(0): a(m)
    for r in range(8):
        nxt = mm(r + 1) if r < 7 else []
        for m in nxt: a(m)
        for f in fin(r): a(f)
    st.stamp(); st.dump(22, 188)
    if end: a("s_endpgm")
```

```python
from asmlib import Asm
from layout import *
from stamps import Stamps
from k3 import VM
import os

CS = 4288
KP = 4 * CS
WR = KP + 4608 + 64
PB = 4 * WR
ZB = PB + 65536
KVX = ZB + 2048
ZS = KVX + 2048
LDS = ZS + 512
TP = 144
SC = "sc1"

def gen(a: Asm):
    st = Stamps(a, 1)
    a(f"""
    s_cmp_ge_u32 s2, 256
    s_cbranch_scc1 L_k2_end
    s_load_dwordx2 s[36:37], s[0:1], 96      ; ws
    s_load_dwordx2 s[38:39], s[0:1], 72      ; D_skip
    s_load_dwordx2 s[40:41], s[0:1], 16      ; wo
    s_load_dwordx2 s[44:45], s[0:1], 80      ; out
    v_and_b32 v1, 63, v0
    v_lshrrev_b32 v2, 6, v0
    s_nop 0
    v_readfirstlane_b32 s22, v2
    s_and_b32 s16, s2, 7
    s_lshr_b32 s17, s2, 3
    s_and_b32 s18, s16, 3
    s_lshl_b32 s18, s18, 2
    s_and_b32 s19, s17, 3
    s_add_u32 s18, s18, s19          ; rb
    s_lshr_b32 s19, s16, 2
    s_lshl_b32 s19, s19, 3
    s_lshr_b32 s20, s17, 2
    s_add_u32 s19, s19, s20          ; cb
    s_lshl_b32 s23, s2, 2
    s_add_u32 s23, s23, s22          ; channel d
    s_mul_i32 s26, s22, {WR}
    s_lshl_b32 s24, s23, 12          ; d*4096
    v_lshlrev_b32 v2, 4, v1          ; lane*16
    s_waitcnt lgkmcnt(0)
    s_mov_b32 s12, s36
    s_mov_b32 s13, s37
    s_mov_b32 s14, 0x10000000
    s_mov_b32 s15, 0x00020000
    s_add_u32 s4, s36, s24
    s_addc_u32 s5, s37, 0
    s_add_u32 s4, s4, {WS_UT}
    s_addc_u32 s5, s5, 0
    s_mov_b32 s6, 4096
    s_mov_b32 s7, 0x00020000
    """)
    st.stamp()
    ACC = 16; S0 = 48; S1 = 120
    for it in range(4):
        b = S0 + 12 * it
        a(f"""
        buffer_load_dwordx4 v[{b}:{b+3}], v2, s[4:7], 0 offen offset:{1024*it}
        buffer_load_dwordx4 v[{b+4}:{b+7}], v2, s[4:7], 0 offen offset:{1024*it+4}
        buffer_load_dwordx2 v[{b+8}:{b+9}], v2, s[4:7], 0 offen offset:{1024*it+16}
        """)
    a(f"""
    s_and_b32 s20, s2, 31            ; head
    s_lshr_b32 s21, s2, 5
    s_lshl_b32 s25, s20, 16
    s_lshl_b32 s27, s22, 14
    s_add_u32 s25, s25, s27
    s_add_u32 s25, s25, {WS_KVP}
    s_add_u32 s27, s27, {PB}
    """)
    for j in range(16):
        a(f"s_add_u32 m0, s27, {1024*j}\ns_add_u32 s29, s25, {1024*j}\nbuffer_load_dwordx4 v2, s[12:15], s29 offen lds")
    a(f"""
    s_and_b32 s27, s22, 1
    s_lshl_b32 s27, s27, 10
    s_lshl_b32 s25, s20, 11
    s_add_u32 s25, s25, s27
    s_add_u32 s25, s25, {WS_ZP}
    s_add_u32 m0, s27, {ZB}
    s_nop 0
    buffer_load_dwordx4 v2, s[12:15], s25 offen lds
    s_lshl_b32 s27, s21, 3
    s_lshl_b32 s25, s22, 1
    s_add_u32 s27, s27, s25
    s_lshl_b32 s27, s27, 5
    s_add_u32 s27, s27, s20
    s_lshl_b32 s27, s27, 11
    s_add_u32 s28, s27, {WS_PQ}
    s_add_u32 s31, s27, {WS_O}
    s_add_u32 s29, s28, 65536
    buffer_load_dwordx4 v[176:179], v2, s[12:15], s28 offen
    buffer_load_dwordx4 v[180:183], v2, s[12:15], s28 offen offset:1024
    buffer_load_dwordx4 v[184:187], v2, s[12:15], s29 offen
    buffer_load_dwordx4 v[188:191], v2, s[12:15], s29 offen offset:1024
    s_add_u32 s27, s24, {WS_KT}
    s_add_u32 s28, s26, {KP+512}
    """)
    for i in range(4):
        a(f"s_add_u32 m0, s28, {1024*i}\ns_add_u32 s29, s27, {1024*i}\nbuffer_load_dwordx4 v2, s[12:15], s29 offen lds")
    a(f"""
    s_mov_b32 s8, s38
    s_mov_b32 s9, s39
    s_mov_b32 s10, 2048
    s_mov_b32 s11, 0x00020000
    s_lshl_b32 s25, s23, 1
    v_mov_b32 v3, s25
    buffer_load_ushort v14, v3, s[8:11], 0 offen
    s_add_u32 s48, s36, {WS_FLG}
    s_addc_u32 s49, s37, 0
    s_mov_b32 s50, 4096
    s_mov_b32 s51, 0x00020000
    s_mov_b32 s52, s40
    s_mov_b32 s53, s41
    s_mov_b32 s54, 0x200000
    s_mov_b32 s55, 0x00020000
    s_mov_b32 s56, s44
    s_mov_b32 s57, s45
    s_mov_b32 s58, 0x800000
    s_mov_b32 s59, 0x00020000
    v_mov_b32 v4, 0
    v_mov_b32 v5, 0
    v_mov_b32 v6, 0
    v_mov_b32 v7, 0
    v_lshlrev_b32 v3, 3, v1
    v_add_u32 v3, s26, v3
    ds_write_b64 v3, v[4:5] offset:{KP}
    v_and_b32 v8, 7, v1
    v_lshlrev_b32 v8, 3, v8
    v_add_u32 v8, s26, v8
    ds_write_b64 v8, v[4:5] offset:{KP+4608}
    v_and_b32 v3, 31, v1
    v_lshrrev_b32 v8, 3, v3
    v_and_b32 v3, 7, v3
    v_add_u32 v9, 256, v3
    v_cmp_gt_u32 vcc, 2, v3
    v_cndmask_b32 v3, v9, v3, vcc
    v_lshlrev_b32 v3, 4, v3
    v_mul_u32_u24 v8, {CS}, v8
    v_add3_u32 v3, v3, v8, s26
    ds_write_b128 v3, v[4:7]
    v_add_u32 v3, s26, v2
    """)
    TOT = 12 + 17 + 4 + 4 + 1
    E = 100
    for it in range(4):
        b = S0 + 12 * it
        e = E + 8 * (it % 2)
        a(f"s_waitcnt vmcnt({TOT - 3*(it+1)})")
        d = [b, b + 1, b + 2, b + 3, b + 8, b + 9]
        for k in range(4):
            a(f"v_alignbyte_b32 v{e+k}, v{d[k+1]}, v{d[k]}, 2")
        for k in range(4):
            a(f"v_alignbyte_b32 v{e+4+k}, v{d[k+2]}, v{d[k+1]}, 2")
        o = 32 + 1024 * it
        a(f"""
        ds_write_b128 v3, v[{b}:{b+3}] offset:{o}
        ds_write_b128 v3, v[{e}:{e+3}] offset:{CS+o}
        ds_write_b128 v3, v[{b+4}:{b+7}] offset:{2*CS+o}
        ds_write_b128 v3, v[{e+4}:{e+7}] offset:{3*CS+o}
        """)
    a(f"""
    s_lshl_b32 s27, s22, 10
    s_add_u32 s27, s27, {PB}
    v_add_u32 v3, s27, v2
    v_lshlrev_b32 v4, 2, v1
    v_add_u32 v4, {ZB}, v4
    s_waitcnt vmcnt(9)
    s_barrier
    """)
    st.stamp()
    for p in range(8):
        a(f"ds_read_b32 v{112+p}, v4 offset:{256*p}")
    for p in range(16):
        a(f"ds_read_b128 v[{48+4*p}:{51+4*p}], v3 offset:{4096*p}")
    a(f"""
    s_waitcnt lgkmcnt(15)
    v_add_f32 v112, v112, v113
    v_add_f32 v114, v114, v115
    v_add_f32 v116, v116, v117
    v_add_f32 v118, v118, v119
    v_add_f32 v112, v112, v114
    v_add_f32 v116, v116, v118
    v_add_f32 v112, v112, v116
    v_mov_b32 v113, v112
    s_nop 1
    v_permlane32_swap_b32 v112, v113
    s_nop 1
    v_add_f32 v112, v112, v113
    s_lshl_b32 s27, s22, 7
    s_add_u32 s27, s27, {ZS}
    v_and_b32 v5, 31, v1
    v_lshlrev_b32 v5, 2, v5
    v_add_u32 v5, s27, v5
    ds_write_b32 v5, v112
    v_lshrrev_b32 v5, 5, v1
    v_lshlrev_b32 v5, 6, v5
    v_add_u32 v5, s27, v5
    s_waitcnt lgkmcnt(0)
    ds_read_b128 v[120:123], v5
    ds_read_b128 v[124:127], v5 offset:16
    ds_read_b128 v[128:131], v5 offset:32
    ds_read_b128 v[132:135], v5 offset:48
    """)
    step = 1
    while step < 16:
        for p in range(0, 16, 2 * step):
            for h in range(2):
                x = 48 + 4 * p + 2 * h; y = 48 + 4 * (p + step) + 2 * h
                a(f"v_pk_add_f32 v[{x}:{x+1}], v[{x}:{x+1}], v[{y}:{y+1}]")
        step *= 2
    a(f"""
    v_cvt_pk_bf16_f32 v52, v48, v49
    v_cvt_pk_bf16_f32 v53, v50, v51
    v_lshlrev_b32 v6, 5, v1
    v_add_u32 v6, {KVX}, v6
    s_lshl_b32 s27, s22, 3
    v_add_u32 v7, s27, v6
    ds_write_b64 v7, v[52:53]
    s_waitcnt lgkmcnt(0)
    s_barrier
    ds_read_b128 v[96:99], v6
    ds_read_b128 v[100:103], v6 offset:16
    """)
    KA = 96
    for j in range(8):
        a(f"v_cvt_pk_bf16_f32 v{KA+8+j}, v{120+2*j}, v{121+2*j}")
    a("s_mov_b32 s30, 0x358637bd\ns_waitcnt vmcnt(5) lgkmcnt(0)")
    PQ = 176; NUM = [16, 48]; DEN = [32, 64]
    for r in range(2):
        p = PQ + 8 * r
        N = f"v[{NUM[r]}:{NUM[r]+15}]"; Dn = f"v[{DEN[r]}:{DEN[r]+15}]"
        a(f"""
        v_mfma_f32_32x32x16_bf16 {Dn}, v[{KA+8}:{KA+11}], v[{p}:{p+3}], 0
        v_mfma_f32_32x32x16_bf16 {N}, v[{KA}:{KA+3}], v[{p}:{p+3}], 0
        v_mfma_f32_32x32x16_bf16 {Dn}, v[{KA+12}:{KA+15}], v[{p+4}:{p+7}], {Dn}
        v_mfma_f32_32x32x16_bf16 {N}, v[{KA+4}:{KA+7}], v[{p+4}:{p+7}], {N}
        """)
    a(f"""
    v_lshrrev_b32 v13, 3, v1
    v_lshlrev_b32 v13, 11, v13
    s_lshl_b32 s3, s19, 7
    v_add_u32 v13, s3, v13
    v_and_b32 v8, 7, v1
    v_lshrrev_b32 v9, 4, v1
    v_and_b32 v9, 1, v9
    v_lshlrev_b32 v9, 2, v9
    v_xor_b32 v8, v8, v9
    v_lshlrev_b32 v8, 4, v8
    v_add_u32 v13, v13, v8
    """)
    for r in range(2):
        p = PQ + 8 * r; Nn = NUM[r]; Dd = DEN[r]
        a(f"""
        v_cvt_pk_bf16_f32 v4, v{Dd}, v{Dd}
        v_lshlrev_b32 v4, 16, v4
        v_add_f32 v4, s30, v4
        v_cvt_pk_bf16_f32 v4, v4, v4
        v_lshlrev_b32 v4, 16, v4
        v_rcp_f32 v4, v4
        """)
        for j in range(8): a(f"v_pk_mul_f32 v[{Nn+2*j}:{Nn+2*j+1}], v[{Nn+2*j}:{Nn+2*j+1}], v[4:5] op_sel_hi:[1,0]")
        for j in range(8): a(f"v_cvt_pk_bf16_f32 v{p+j}, v{Nn+2*j}, v{Nn+2*j+1}")
        a(f"""
        buffer_store_dwordx4 v[{p}:{p+3}], v2, s[12:15], s31 offen
        buffer_store_dwordx4 v[{p+4}:{p+7}], v2, s[12:15], s31 offen offset:1024
        s_add_u32 s31, s31, 65536
        """)
    def chunk_dma(lds_sgpr, chunk_sgpr_bytes):
        for j in range(16):
            a(f"s_add_u32 m0, s{lds_sgpr}, {1024*j}\ns_add_u32 s29, s{chunk_sgpr_bytes}, {16384*j}\nbuffer_load_dwordx4 v13, s[52:55], s29 offen lds")
    a(f"""
    s_lshl_b32 s27, s22, 14
    s_add_u32 s27, s27, {PB}
    s_lshl_b32 s28, s22, 18
    """)
    slab = [f"s_add_u32 m0, s27, {1024*j}\ns_add_u32 s29, s28, {16384*j}\nbuffer_load_dwordx4 v13, s[52:55], s29 offen lds" for j in range(16)]
    st.stamp()
    a(f"""
    v_and_b32 v4, 15, v1
    v_lshrrev_b32 v5, 4, v1
    v_sub_u32 v6, 3, v4
    v_and_b32 v6, 3, v6
    v_mul_u32_u24 v6, {CS}, v6
    v_lshrrev_b32 v7, 2, v4
    v_lshlrev_b32 v7, 3, v7
    v_lshlrev_b32 v8, 4, v5
    v_add_u32 v6, v6, v8
    v_sub_u32 v6, v6, v7
    v_add_u32 v6, 24, v6
    v_add_u32 v6, s26, v6
    v_lshlrev_b32 v7, 5, v4
    v_add3_u32 v7, v7, v8, s26
    v_add_u32 v7, {KP}, v7
    s_lshl_b32 s3, s21, 8
    v_mov_b32 v11, s3
    v_mov_b32 v12, 1
    """)
    for i in range(32): a(f"v_mov_b32 v{ACC+i}, 0")
    a("s_waitcnt vmcnt(4) lgkmcnt(0)")
    def reads(S, rho):
        out = []
        ii = range(9) if rho == 0 else range(8)
        ww = range(-1, 8) if rho == 0 else range(8)
        ra, rb = [], []
        for i in ii:
            q = rho + 8 * i
            off = 64 * (64 - q)
            ra.append([f"ds_read_b64 v[{S+4*i}:{S+4*i+1}], v6 offset:{off}", f"ds_read_b64 v[{S+4*i+2}:{S+4*i+3}], v6 offset:{off+8}"])
        for w in ww:
            r = 8 * w - rho
            rb.append([f"ds_read_b128 v[{S+36+4*(w+1)}:{S+36+4*(w+1)+3}], v7 offset:{64*(r+8)}"])
        for x, y in zip(ra, rb):
            out += y + x
        return out
    def mfmas(S, rho):
        out = []
        ii = range(9) if rho == 0 else range(8)
        ww = range(-1, 8) if rho == 0 else range(8)
        for i in ii:
            for w in ww:
                t = i + w
                if 0 <= t <= 7:
                    C = f"v[{ACC+4*t}:{ACC+4*t+3}]"
                    out.append(f"v_mfma_f32_16x16x32_bf16 {C}, v[{S+4*i}:{S+4*i+3}], v[{S+36+4*(w+1)}:{S+36+4*(w+1)+3}], {C}")
        return out
    for r in reads(S0, 0): a(r)
    for rho in range(8):
        S = S0 if rho % 2 == 0 else S1
        Sn = S1 if rho % 2 == 0 else S0
        a("s_waitcnt lgkmcnt(0)")
        if rho == 2:
            a("""
            s_waitcnt vmcnt(16)
            v_cmp_eq_u32 vcc, 0, v1
            s_and_saveexec_b64 s[60:61], vcc
            buffer_atomic_add v12, v11, s[48:51], 0 offen
            s_mov_b64 exec, -1
            """)
        ms = mfmas(S, rho)
        rd = reads(Sn, rho + 1) if rho < 7 else []
        if rho == 0: rd = rd + slab[0:8]
        if rho == 1: rd = rd + slab[8:16]
        if rho == 6: rd = rd + ["buffer_load_dword v10, v3, s[48:51], 0 offen sc1"]
        if rho == 7:
            a.label("L_k23_poll_o")
            a("""
            s_waitcnt vmcnt(0)
            v_readfirstlane_b32 s3, v10
            s_nop 1
            s_cmp_ge_u32 s3, 128
            s_cbranch_scc1 L_k23_o_ok
            s_sleep 8
            buffer_load_dword v10, v3, s[48:51], 0 offen sc1
            s_branch L_k23_poll_o
            """)
            a.label("L_k23_o_ok")
            rd = [f"s_add_u32 s29, s28, {n*1024}\nbuffer_load_dwordx4 v[{64+4*n}:{67+4*n}], v2, s[12:15], s29 offen {SC}" for n in range(8)]
        k = 0
        for m in ms:
            a(m)
            if k < len(rd): a(rd[k]); k += 1
        while k < len(rd): a(rd[k]); k += 1
        if rho == 2:
            a(f"""
            s_lshl_b32 s28, s18, 2
            s_add_u32 s28, s28, s22
            s_lshl_b32 s28, s28, 16
            s_add_u32 s28, s28, {WS_O}
            s_lshr_b32 s3, s18, 1
            s_lshl_b32 s3, s3, 8
            v_mov_b32 v3, s3
            """)
    st.stamp()
    a(f"""
    v_lshlrev_b32 v8, 5, v4
    v_lshlrev_b32 v9, 3, v5
    v_add_u32 v8, v8, v9
    v_sub_u32 v9, {2*(2060-1792)}, v8
    v_add_u32 v9, s26, v9
    v_lshlrev_b32 v14, 16, v14
    v_mov_b32 v15, v14
    s_add_u32 s27, s24, {WS_YT}
    s_mov_b32 s30, 0xffff0000
    """)
    U = 48
    for t in range(8):
        a(f"ds_read_b64 v[{U+2*t}:{U+2*t+1}], v9 offset:{512*(7-t)}")
    a("s_waitcnt lgkmcnt(0)")
    for n in range(8):
        a(f"s_add_u32 s29, s28, {(8+n)*1024}\nbuffer_load_dwordx4 v[{96+4*n}:{99+4*n}], v2, s[12:15], s29 offen {SC}")
    a(f"s_lshl_b32 s25, s22, 18\ns_add_u32 s25, s25, {4<<18}")
    chunk_dma(26, 25)
    for t in range(8):
        T = 128 + 16 * (t % 4)
        y = ACC + 4 * t
        u0, u1 = U + 2 * t, U + 2 * t + 1
        a(f"""
        v_and_b32 v{T}, s30, v{u1}
        v_lshlrev_b32 v{T+1}, 16, v{u1}
        v_and_b32 v{T+2}, s30, v{u0}
        v_lshlrev_b32 v{T+3}, 16, v{u0}
        v_cvt_pk_bf16_f32 v{T+8}, v{y}, v{y+1}
        v_cvt_pk_bf16_f32 v{T+9}, v{y+2}, v{y+3}
        v_pk_mul_f32 v[{T}:{T+1}], v[{T}:{T+1}], v[14:15]
        v_pk_mul_f32 v[{T+2}:{T+3}], v[{T+2}:{T+3}], v[14:15]
        v_lshlrev_b32 v{T+4}, 16, v{T+8}
        v_and_b32 v{T+5}, s30, v{T+8}
        v_lshlrev_b32 v{T+6}, 16, v{T+9}
        v_and_b32 v{T+7}, s30, v{T+9}
        v_cvt_pk_bf16_f32 v{T+8}, v{T}, v{T+1}
        v_cvt_pk_bf16_f32 v{T+9}, v{T+2}, v{T+3}
        v_lshlrev_b32 v{T}, 16, v{T+8}
        v_and_b32 v{T+1}, s30, v{T+8}
        v_lshlrev_b32 v{T+2}, 16, v{T+9}
        v_and_b32 v{T+3}, s30, v{T+9}
        v_pk_add_f32 v[{T}:{T+1}], v[{T}:{T+1}], v[{T+4}:{T+5}]
        v_pk_add_f32 v[{T+2}:{T+3}], v[{T+2}:{T+3}], v[{T+6}:{T+7}]
        v_cvt_pk_bf16_f32 v{T+10}, v{T}, v{T+1}
        v_cvt_pk_bf16_f32 v{T+11}, v{T+2}, v{T+3}
        buffer_store_dwordx2 v[{T+10}:{T+11}], v8, s[12:15], s27 offen offset:{512*t}
        """)
    st.stamp()
    gemm2(a, st)
    a.label("L_k2_end")
    a("s_endpgm")
    return dict(vgpr=192, block=256, lds=LDS)

def gemm2(a, st):
    vm = VM(a)
    vm.q += ["A0"] * 8 + ["A1"] * 8 + ["D4"] * 16 + ["YS"] * 8
    a(f"""
    v_lshlrev_b32 v7, 4, v1
    s_lshr_b32 s3, s2, 5
    s_lshl_b32 s3, s3, 8
    s_add_u32 s3, s3, 2048
    v_mov_b32 v14, s3                ; y counter
    s_barrier
    """)
    st.stamp()
    AB = [64, 96, 128]
    def Aload(c):
        B = AB[c % 3]
        for n in range(8):
            off = (8 * c + n) * 1024
            vm.issue(f"A{c}", f"s_add_u32 s29, s28, {off}\nbuffer_load_dwordx4 v[{B+4*n}:{B+4*n+3}], v7, s[12:15], s29 offen {SC}")
    YR = 16
    TB = PB
    a(f"""
    s_lshr_b32 s23, s2, 5
    s_lshl_b32 s23, s23, 7
    s_and_b32 s24, s2, 31
    s_lshl_b32 s24, s24, 6
    v_lshrrev_b32 v4, 3, v0
    v_and_b32 v5, 7, v0
    v_lshlrev_b32 v5, 4, v5
    v_add_u32 v3, s23, v4
    v_lshlrev_b32 v3, 12, v3
    v_add_u32 v3, v3, v5
    s_lshl_b32 s25, s24, 1
    s_add_u32 s25, s25, {WS_YT}
    v_mul_u32_u24 v15, {TP}, v4
    v_add_u32 v15, v15, v5
    v_add_u32 v15, {TB}, v15
    v_and_b32 v2, 15, v1
    v_lshrrev_b32 v4, 2, v2
    v_and_b32 v5, 3, v2
    v_lshrrev_b32 v9, 4, v1
    v_lshlrev_b32 v8, 3, v9
    v_add_u32 v8, v8, v4
    s_lshl_b32 s26, s22, 5
    v_add_u32 v8, s26, v8
    v_mul_u32_u24 v8, {TP}, v8
    v_lshlrev_b32 v5, 3, v5
    v_add_u32 v8, v8, v5
    v_add_u32 v8, {TB}, v8
    v_add_u32 v2, s24, v2
    v_lshlrev_b32 v2, 12, v2
    v_lshlrev_b32 v9, 4, v9
    v_add_u32 v9, v2, v9
    s_lshl_b32 s26, s22, 6
    s_lshl_b32 s30, s23, 1
    s_add_u32 s26, s26, s30
    s_add_u32 s30, s26, 2048
    v_lshrrev_b32 v10, 5, v1
    v_lshlrev_b32 v10, 2, v10
    v_and_b32 v11, 15, v1
    v_lshrrev_b32 v11, 2, v11
    v_add_u32 v10, v10, v11
    v_lshlrev_b32 v10, 7, v10
    v_lshrrev_b32 v6, 4, v1
    v_and_b32 v6, 1, v6
    v_lshlrev_b32 v6, 1, v6
    v_and_b32 v13, 3, v1
    v_lshrrev_b32 v2, 1, v13
    v_add_u32 v6, v6, v2
    v_lshrrev_b32 v11, 1, v11
    v_and_b32 v11, 1, v11
    v_lshlrev_b32 v11, 2, v11
    v_xor_b32 v6, v6, v11
    v_lshlrev_b32 v6, 4, v6
    v_add_u32 v10, v10, v6
    v_and_b32 v13, 1, v13
    v_lshlrev_b32 v13, 3, v13
    v_add_u32 v6, v10, v13
    v_xor_b32 v13, 64, v6            ; ct1
    v_add_u32 v10, {PB}, v6          ; chunks 0..3
    v_add_u32 v11, {PB}, v13
    v_add_u32 v4, {3*WR}, v6         ; chunk 7
    v_add_u32 v5, {3*WR}, v13
    """)
    ACC = 32; BB = 160
    def breads(n):
        c = n >> 3
        if c < 4: ra, base = (10, 11), c * 16384
        elif c < 7: ra, base = (6, 13), (c - 4) * WR
        else: ra, base = (4, 5), 0
        R = BB + 8 * (n % 4)
        out = []
        for ct in range(2):
            for hh in range(2):
                off = base + ((n & 7) * 16 + 8 * hh) * 128
                out.append(f"ds_read_b64_tr_b16 v[{R+4*ct+2*hh}:{R+4*ct+2*hh+1}], v{ra[ct]} offset:{off}")
        return out
    for n in range(3):
        for r in breads(n): a(r)
    vm.wait("A0")
    st.stamp()
    for n in range(64):
        c = n >> 3
        if n % 8 == 0 and n > 0:
            vm.wait(f"A{c}")
        if n in (28, 44):
            a("s_barrier")
        inflight = min(2, 63 - n) * 4
        a(f"s_waitcnt lgkmcnt({inflight})")
        R = BB + 8 * (n % 4)
        Af = AB[c % 3] + 4 * (n & 7)
        rd = breads(n + 3) if n + 3 < 64 else []
        for ct in range(2):
            C = f"v[{ACC+16*ct}:{ACC+16*ct+15}]"
            a(f"v_mfma_f32_32x32x16_bf16 {C}, v[{R+4*ct}:{R+4*ct+3}], v[{Af}:{Af+3}], {'0' if n == 0 else C}")
            for r in rd[2*ct:2*ct+2]: a(r)
        if n == 6:
            vm.wait("YS")
            a("v_cmp_eq_u32 vcc, 0, v1\ns_and_saveexec_b64 s[60:61], vcc")
            vm.issue("AT", "buffer_atomic_add v12, v14, s[48:51], 0 offen")
            a("s_mov_b64 exec, -1")
        if n == 28:
            for i in range(4):
                vm.issue("Y", f"s_add_u32 s26, s25, {i*32*4096}\nbuffer_load_dwordx4 v[{YR+4*i}:{YR+4*i+3}], v3, s[12:15], s26 offen {SC}")
        if n % 8 == 4:
            if c + 2 < 8: Aload(c + 2)
        if n == 26:
            a("s_cmp_lg_u32 s22, 0\ns_cbranch_scc1 L_k23_y_ok")
            a.label("L_k23_poll_y")
            a(f"""
            buffer_load_dword v2, v14, s[48:51], 0 offen sc1
            s_waitcnt vmcnt(0)
            v_readfirstlane_b32 s3, v2
            s_nop 1
            s_cmp_ge_u32 s3, 128
            s_cbranch_scc1 L_k23_y_ok
            s_sleep 8
            s_branch L_k23_poll_y
            """)
            a.label("L_k23_y_ok")
        if n == 40:
            for i in range(4):
                a(f"ds_write_b128 v15, v[{YR+4*i}:{YR+4*i+3}] offset:{32*i*TP}")
        if n == 45:
            for cg in range(4):
                for h in range(2):
                    a(f"ds_read_b64_tr_b16 v[{YR+4*cg+2*h}:{YR+4*cg+2*h+1}], v8 offset:{4*h*TP + 32*cg}")
        if n == 49:
            for cg in range(4):
                vm.issue("S", f"s_add_u32 s29, s30, {cg*16*4096}\nbuffer_store_dwordx4 v[{YR+4*cg}:{YR+4*cg+3}], v9, s[56:59], s29 offen NOSF")
    st.stamp()
    a(f"""
    v_and_b32 v2, 31, v1
    s_lshl_b32 s26, s18, 7
    s_lshl_b32 s29, s22, 5
    s_add_u32 s26, s26, s29
    v_add_u32 v2, s26, v2
    v_lshlrev_b32 v2, 12, v2
    v_lshrrev_b32 v3, 5, v1
    v_lshlrev_b32 v3, 3, v3
    v_add_u32 v2, v2, v3
    s_lshl_b32 s26, s19, 7
    """)
    for j in range(16):
        a(f"v_cvt_pk_bf16_f32 v{64+j}, v{ACC+2*j}, v{ACC+2*j+1}")
    for ct in range(2):
        for g4 in range(4):
            r = 64 + 8 * ct + 2 * g4
            a(f"buffer_store_dwordx2 v[{r}:{r+1}], v2, s[56:59], s26 offen offset:{64*ct+16*g4} NOSF")
    st.stamp(); st.dump(22)
    a("s_endpgm")
```

```python
import sys, os
from asmlib import Asm
from layout import *

HEADER = open("cdna_kernels/" + NAME + ".s.ref").read().split("; Override launch")[0]

def kernel_desc(name, vgpr, sgpr=96):
    return f"""
.section .rodata,"a"
.p2align 6
.amdhsa_kernel {name}
  .amdhsa_next_free_vgpr {vgpr}
  .amdhsa_next_free_sgpr {sgpr}
  .amdhsa_accum_offset {((vgpr+3)//4)*4}
  .amdhsa_group_segment_fixed_size 0
  .amdhsa_kernarg_size 104
  .amdhsa_user_sgpr_count 2
  .amdhsa_user_sgpr_kernarg_segment_ptr 1
  .amdhsa_system_sgpr_workgroup_id_x 1
.end_amdhsa_kernel
"""

def kernel_text(name, body):
    return f"""
.text
.globl {name}
.p2align 8
.type {name},@function
{name}:
{body}
"""

def build(stages=("k1",), out=None):
    launches = []; texts = []; descs = []
    if "k1" in stages:
        import k1
        a = Asm(os.environ.get('SF1', '')); info = k1.gen(a)
        texts.append(kernel_text("k1_kernel", a.finalize()))
        descs.append(kernel_desc("k1_kernel", info["vgpr"]))
        launches.append(f"; @launch kernel=k1_kernel grid=({info.get('grid',256)},1,1) block=({info['block']},1,1) lds={info['lds']}")
    if "k2" in stages:
        import k2
        a = Asm(os.environ.get('SF2', '')); info = k2.gen(a)
        texts.append(kernel_text("k2_kernel", a.finalize()))
        descs.append(kernel_desc("k2_kernel", info["vgpr"]))
        launches.append(f"; @launch kernel=k2_kernel grid=(256,1,1) block=({info['block']},1,1) lds={info['lds']}")
    if "k23" in stages:
        import k23
        a = Asm("sc1"); info = k23.gen(a)
        texts.append(kernel_text("k2_kernel", a.finalize()))
        descs.append(kernel_desc("k2_kernel", info["vgpr"]))
        launches.append(f"; @launch kernel=k2_kernel grid=(256,1,1) block=({info['block']},1,1) lds={info['lds']}")
    if "k3" in stages:
        import k3
        a = Asm(os.environ.get('SF3', '')); info = k3.gen(a)
        texts.append(kernel_text("k3_kernel", a.finalize()))
        descs.append(kernel_desc("k3_kernel", info["vgpr"]))
        launches.append(f"; @launch kernel=k3_kernel grid=(256,1,1) block=({info['block']},1,1) lds={info['lds']}")
    s = HEADER + "\n".join(launches) + '\n.amdgcn_target "amdgcn-amd-amdhsa--gfx950"\n' + "".join(texts) + "".join(descs)
    open(out, "w").write(s)

if __name__ == "__main__":
    stages = sys.argv[1].split(",")
    build(stages, sys.argv[2])
```

```python
from asmlib import Asm
from layout import *
from stamps import Stamps
import struct, math, os

def f2u(x): return struct.unpack("<I", struct.pack("<f", x))[0]
L2E = math.log2(math.e)
L2E_HI = struct.unpack("<f", struct.pack("<I", 0x3fb8aa3b))[0]
L2E_LO = L2E - L2E_HI

AUXW = 6912
TP = 80
BB = 32768
BS = 12288
NPF = int(os.environ.get('NPF', '3'))

def gen(a: Asm):
    st = Stamps(a, 0)
    a(f"""
    s_cmp_ge_u32 s2, 512
    s_cbranch_scc1 L_k1_end
    s_xor_b32 s2, s2, {256 if os.environ.get('AUXFIRST','0')=='1' else 0}
    s_load_dwordx8 s[32:39], s[0:1], 0
    s_load_dwordx8 s[48:55], s[0:1], 32
    s_load_dwordx2 s[56:57], s[0:1], 64      ; log_dt
    s_load_dwordx2 s[58:59], s[0:1], 96      ; ws
    v_and_b32 v1, 63, v0
    v_lshrrev_b32 v2, 6, v0
    s_nop 0
    v_readfirstlane_b32 s22, v2      ; wave 0..3
    s_waitcnt lgkmcnt(0)
    s_mov_b32 s12, s58
    s_mov_b32 s13, s59
    s_mov_b32 s14, 0x10000000
    s_mov_b32 s15, 0x00020000
    """)
    st.stamp()
    a("s_cmp_ge_u32 s2, 256\ns_cbranch_scc1 L_k1_aux")
    sv = st.n
    gemm(a, st)
    st.n = sv
    a.label("L_k1_aux")
    aux(a, st)
    a.label("L_k1_end")
    a("s_endpgm")
    return dict(vgpr=224, block=256, lds=81920, grid=256 if os.environ.get('NOAUX') == '1' else 512)

def aux(a, st):
    a(f"""
    s_sub_u32 s16, s2, 256           ; g
    v_lshlrev_b32 v2, 6, v1
    v_mov_b32 v3, 0
    s_mov_b32 s20, {WS_FLG}
    s_or_b32 s21, s16, s22
    s_cmp_lg_u32 s21, 0
    s_cbranch_scc1 L_k1_noflag
    buffer_store_dword v3, v2, s[12:15], s20 offen
    L_k1_noflag:
    s_lshl_b32 s25, s16, 2
    s_add_u32 s25, s25, s22          ; d
    s_lshl_b32 s26, s25, 8
    v_lshlrev_b32 v7, 1, v1
    s_mov_b32 s46, 0x40000
    s_mov_b32 s47, 0x00020000
    """)
    for idx, lo in enumerate((48, 50, 52, 54)):
        a(f"""
        s_mov_b32 s44, s{lo}
        s_mov_b32 s45, s{lo+1}
        buffer_load_ushort v{32+2*idx}, v7, s[44:47], s26 offen
        buffer_load_ushort v{33+2*idx}, v7, s[44:47], s26 offen offset:128
        """)
    a(f"""
    s_mov_b32 s44, s56
    s_mov_b32 s45, s57
    s_mov_b32 s46, 2048
    s_lshl_b32 s20, s25, 1
    v_mov_b32 v8, s20
    buffer_load_ushort v40, v8, s[44:47], 0 offen
    s_mul_i32 s26, s22, {AUXW}
    s_mov_b32 s40, 0x3fb8aa3b
    s_mov_b32 s41, {f2u(L2E_LO)}
    s_mov_b32 s42, {f2u(math.log(2.0))}
    s_mov_b32 s43, {f2u(1.0/(2*math.pi))}
    s_waitcnt vmcnt(0)
    """)
    st.stamp()
    for i in range(9): a(f"v_lshlrev_b32 v{32+i}, 16, v{32+i}")
    def exp_bf16(dst, src, t):
        a(f"""
        v_mul_f32 v{t}, s40, v{src}
        v_fma_f32 v{t+1}, v{src}, s40, -v{t}
        v_fma_f32 v{t+1}, v{src}, s41, v{t+1}
        v_exp_f32 v{t}, v{t}
        v_mul_f32 v{t+1}, s42, v{t+1}
        v_fma_f32 v{t}, v{t}, v{t+1}, v{t}
        v_cvt_pk_bf16_f32 v{t}, v{t}, v{t}
        v_lshlrev_b32 v{dst}, 16, v{t}
        """)
    exp_bf16(40, 40, 56)
    exp_bf16(32, 32, 58)
    exp_bf16(33, 33, 60)
    a(f"""
    v_max_f32_e64 v44, |v36|, |v37|
    v_max3_f32 v44, |v38|, |v39|, v44
    s_nop 1
    v_max_f32_dpp v44, v44, v44 row_ror:1 row_mask:0xf bank_mask:0xf
    s_nop 1
    v_max_f32_dpp v44, v44, v44 row_ror:2 row_mask:0xf bank_mask:0xf
    s_nop 1
    v_max_f32_dpp v44, v44, v44 row_ror:4 row_mask:0xf bank_mask:0xf
    s_nop 1
    v_max_f32_dpp v44, v44, v44 row_ror:8 row_mask:0xf bank_mask:0xf
    s_nop 1
    v_readlane_b32 s32, v44, 0
    v_readlane_b32 s33, v44, 16
    v_readlane_b32 s34, v44, 32
    v_readlane_b32 s35, v44, 48
    s_nop 1
    s_max_u32 s32, s32, s33
    s_max_u32 s34, s34, s35
    s_max_u32 s32, s32, s34
    s_lshr_b32 s32, s32, 23
    s_min_u32 s32, s32, 252
    s_sub_u32 s33, 253, s32
    s_lshl_b32 s33, s33, 23          ; scale
    s_add_u32 s32, s32, 1
    s_lshl_b32 s32, s32, 23
    v_add_f32 v46, v40, v40
    v_mul_f32 v111, s32, v46
    """)
    for h in range(2):
        P = 48 + 4 * h
        a(f"""
        v_mul_f32 v{P}, v{32+h}, v40
        v_mul_f32 v{P+1}, v{34+h}, v40
        v_mul_f32 v{P+2}, s33, v{36+h}
        v_mul_f32 v{P+3}, s33, v{38+h}
        v_mul_f32 v{P}, s40, v{P}
        v_mul_f32 v{P+1}, s43, v{P+1}
        v_sub_f32 v{P}, 0, v{P}
        """)
    a(f"""
    v_lshlrev_b32 v2, 4, v1
    v_add_u32 v2, s26, v2
    ds_write_b128 v2, v[48:51]
    ds_write_b128 v2, v[52:55] offset:1024
    v_and_b32 v3, 15, v1             ; idx
    v_lshrrev_b32 v4, 4, v1          ; kg / g
    v_and_b32 v5, 7, v3
    v_lshrrev_b32 v6, 3, v3
    v_lshl_add_u32 v8, v6, 7, v5
    v_and_b32 v6, 3, v3
    v_lshlrev_b32 v6, 1, v6
    v_lshrrev_b32 v7, 2, v3
    v_lshl_add_u32 v6, v7, 7, v6
    v_add_u32 v6, 256, v6
    v_and_b32 v7, 1, v3
    v_lshlrev_b32 v7, 2, v7
    v_lshrrev_b32 v9, 1, v3
    v_and_b32 v9, 3, v9
    v_lshl_add_u32 v7, v9, 7, v7
    v_add_u32 v7, 512, v7
    v_cmp_gt_u32 vcc, 8, v3
    v_cndmask_b32 v10, v7, v6, vcc
    v_lshlrev_b32 v7, 7, v3
    v_add_u32 v7, 1024, v7
    v_min_u32 v12, 2176, v7
    v_lshlrev_b32 v6, 2, v3
    v_add_u32 v6, s26, v6
    ds_write_b32 v6, v8 offset:6656
    ds_write_b32 v6, v10 offset:6720
    ds_write_b32 v6, v12 offset:6784
    v_cvt_f32_u32 v8, v8
    v_cvt_f32_u32 v10, v10
    v_cvt_f32_u32 v12, v12
    v_mov_b32 v9, v8
    v_mov_b32 v11, v10
    v_mov_b32 v13, v12
    v_lshlrev_b32 v14, 3, v3
    v_cvt_f32_u32 v14, v14
    v_mov_b32 v15, v14
    v_lshlrev_b32 v7, 6, v4
    v_add_u32 v7, s26, v7
    """)
    PR = 16; AH = 64; BH = 88; AC = 96
    M = range(4)
    def evals(pf, TMP):
        for m in M: a(f"v_pk_mul_f32 v[{TMP+4*m}:{TMP+4*m+1}], v[{PR+4*m}:{PR+4*m+1}], v[{pf}:{pf+1}]")
        for m in M: a(f"v_fract_f32 v{TMP+4*m+1}, v{TMP+4*m+1}")
        for m in M: a(f"v_exp_f32 v{TMP+4*m}, v{TMP+4*m}")
        for m in M: a(f"v_cos_f32 v{TMP+4*m+2}, v{TMP+4*m+1}")
        for m in M: a(f"v_sin_f32 v{TMP+4*m+3}, v{TMP+4*m+1}")
        for m in M: a(f"v_pk_mul_f32 v[{TMP+4*m+2}:{TMP+4*m+3}], v[{TMP+4*m+2}:{TMP+4*m+3}], v[{TMP+4*m}:{TMP+4*m+1}] op_sel_hi:[1,0]")
    for i in range(12): a(f"v_mov_b32 v{AC+i}, 0")
    a("s_mov_b32 s21, 0\ns_waitcnt lgkmcnt(0)")
    a.label("L_kg_loop")
    for m in M:
        a(f"ds_read_b128 v[{PR+4*m}:{PR+4*m+3}], v7 offset:{16*m}")
    a("v_add_u32 v7, 256, v7\ns_waitcnt lgkmcnt(0)")
    T0, T1 = 32, 48
    evals(14, T0)
    for m in M: a(f"v_pk_mul_f32 v[{T0+4*m}:{T0+4*m+1}], v[{T0+4*m+2}:{T0+4*m+3}], v[{PR+4*m+2}:{PR+4*m+3}] op_sel_hi:[1,0] neg_hi:[0,1]")
    for m in M: a(f"v_pk_fma_f32 v[{T0+4*m}:{T0+4*m+1}], v[{T0+4*m+2}:{T0+4*m+3}], v[{PR+4*m+2}:{PR+4*m+3}], v[{T0+4*m}:{T0+4*m+1}] op_sel:[1,1,0] op_sel_hi:[0,1,1] neg_lo:[0,1,0] neg_hi:[0,1,0]")
    for m in M: a(f"v_cvt_pk_f16_f32 v{BH+m}, v{T0+4*m}, v{T0+4*m+1}")
    for T in range(3):
        TMP = T1 if T % 2 == 0 else T0
        evals(8 + 2 * T, TMP)
        for m in M: a(f"v_cvt_pk_f16_f32 v{AH+4*T+m}, v{TMP+4*m+2}, v{TMP+4*m+3}")
        C = f"v[{AC+4*T}:{AC+4*T+3}]"
        a(f"v_mfma_f32_16x16x32_f16 {C}, v[{AH+4*T}:{AH+4*T+3}], v[{BH}:{BH+3}], {C}")
    a("s_add_u32 s21, s21, 1\ns_cmp_lt_u32 s21, 8\ns_cbranch_scc1 L_kg_loop")
    st.stamp()
    a(f"""
    s_mov_b32 s44, s38
    s_mov_b32 s45, s39
    s_mov_b32 s46, 0x400000
    s_and_b32 s23, s16, 31
    s_lshl_b32 s23, s23, 6           ; l0
    s_lshr_b32 s24, s16, 5
    s_lshl_b32 s24, s24, 7
    s_lshl_b32 s20, s22, 5
    s_add_u32 s24, s24, s20          ; d0
    v_lshrrev_b32 v2, 2, v1
    v_and_b32 v5, 3, v1
    v_add_u32 v2, s23, v2
    v_lshlrev_b32 v2, 11, v2
    v_lshlrev_b32 v5, 4, v5
    v_add_u32 v2, v2, v5
    s_lshl_b32 s20, s24, 1
    v_add_u32 v2, s20, v2
    s_mov_b32 s20, 32768
    s_mov_b32 s21, 65536
    s_mov_b32 s27, 98304
    buffer_load_dwordx4 v[112:115], v2, s[44:47], 0 offen
    buffer_load_dwordx4 v[116:119], v2, s[44:47], s20 offen
    buffer_load_dwordx4 v[120:123], v2, s[44:47], s21 offen
    buffer_load_dwordx4 v[124:127], v2, s[44:47], s27 offen
    s_mov_b32 s44, s36
    s_mov_b32 s45, s37
    s_mov_b32 s46, 0x200000
    s_lshl_b32 s20, s16, 13
    s_lshl_b32 s21, s22, 11
    s_add_u32 s20, s20, s21
    v_and_b32 v2, 15, v1
    v_lshlrev_b32 v2, 7, v2
    buffer_load_dword v221, v2, s[44:47], s20 offen
    """)
    a(f"""
    v_lshlrev_b32 v6, 4, v4
    v_add_u32 v6, s26, v6
    ds_read_b128 v[16:19], v6 offset:6656
    ds_read_b128 v[20:23], v6 offset:6720
    ds_read_b128 v[24:27], v6 offset:6784
    s_add_u32 s3, s26, 2048
    v_lshlrev_b32 v5, 4, v3
    v_add_u32 v5, s3, v5
    """)
    for i in range(12): a(f"v_mul_f32 v{AC+i}, v111, v{AC+i}")
    a("s_waitcnt lgkmcnt(0)")
    for i in range(12):
        a(f"v_lshl_add_u32 v{16+i}, v{16+i}, 1, v5")
    for i in range(0, 12, 2):
        a(f"v_cvt_pk_bf16_f32 v{32+i}, v{AC+i}, v{AC+i+1}")
    for i in range(0, 12, 2):
        a(f"ds_write_b16 v{16+i}, v{32+i}")
        a(f"ds_write_b16_d16_hi v{16+i+1}, v{32+i}")
    a(f"""
    v_lshlrev_b32 v2, 3, v1
    v_cvt_f32_u32 v2, v2
    v_lshlrev_b32 v3, 4, v1
    s_lshl_b32 s28, s25, 12
    s_add_u32 s28, s28, {WS_KT}
    s_mov_b32 s30, 0xffff0000
    """)
    for i in range(4):
        B = 128 + 16 * i
        for jp in range(4):
            t = B + 4 * jp
            a(f"v_add_f32 v{t}, {float(512*i + 2*jp)!r}, v2\nv_add_f32 v{t+1}, {float(512*i + 2*jp + 1)!r}, v2")
        for jp in range(4):
            t = B + 4 * jp
            a(f"v_cvt_pk_bf16_f32 v{t}, v{t}, v{t+1}")
        for jp in range(4):
            t = B + 4 * jp
            a(f"v_and_b32 v{t+1}, 0xffff0000, v{t}\nv_lshlrev_b32 v{t}, 16, v{t}")
        for jp in range(4):
            t = B + 4 * jp
            a(f"v_cvt_u32_f32 v{t}, v{t}\nv_cvt_u32_f32 v{t+1}, v{t+1}")
        for jp in range(4):
            t = B + 4 * jp
            a(f"v_lshl_add_u32 v{t}, v{t}, 1, s3\nv_lshl_add_u32 v{t+1}, v{t+1}, 1, s3")
    a("s_waitcnt lgkmcnt(0)")
    for i in range(4):
        B = 128 + 16 * i
        o = 32 + 4 * i
        for jp in range(4):
            t = B + 4 * jp
            a(f"ds_read_u16 v{o+jp}, v{t}\nds_read_u16_d16_hi v{o+16+jp}, v{t+1}")
    a("s_waitcnt lgkmcnt(0)")
    for i in range(16):
        a(f"v_and_or_b32 v{32+i}, v{48+i}, s30, v{32+i}")
    for i in range(4):
        a(f"buffer_store_dwordx4 v[{32+4*i}:{35+4*i}], v3, s[12:15], s28 offen offset:{1024*i}")
    st.stamp()
    a(f"""
    v_lshrrev_b32 v2, 2, v1
    v_and_b32 v3, 3, v1
    v_mul_u32_u24 v6, {TP}, v2
    v_lshlrev_b32 v3, 4, v3
    v_add3_u32 v6, v6, v3, s26
    s_waitcnt vmcnt(4)
    ds_write_b128 v6, v[112:115]
    ds_write_b128 v6, v[116:119] offset:{16*TP}
    ds_write_b128 v6, v[120:123] offset:{32*TP}
    ds_write_b128 v6, v[124:127] offset:{48*TP}
    v_and_b32 v2, 15, v1
    v_lshrrev_b32 v3, 2, v2
    v_and_b32 v4, 3, v2
    v_lshrrev_b32 v5, 4, v1
    v_lshlrev_b32 v6, 3, v5
    v_add_u32 v6, v6, v3
    v_sub_u32 v6, 27, v6
    v_mul_u32_u24 v6, {TP}, v6
    v_lshlrev_b32 v4, 3, v4
    v_add3_u32 v6, v6, v4, s26
    s_waitcnt lgkmcnt(0)
    """)
    for cg in range(2):
        for lh in range(2):
            for h in range(2):
                off = (32 * (1 - lh) + 4 * (1 - h)) * TP + 32 * cg
                reg = 16 + 4 * (2 * cg + lh) + 2 * h
                a(f"ds_read_b64_tr_b16 v[{reg}:{reg+1}], v6 offset:{off}")
    a(f"""
    v_add_u32 v2, s24, v2
    v_lshlrev_b32 v2, 12, v2
    v_lshlrev_b32 v5, 4, v5
    v_add_u32 v2, v2, v5
    s_sub_u32 s20, 1984, s23
    s_lshl_b32 s20, s20, 1
    s_add_u32 s20, s20, {WS_UT}
    s_add_u32 s21, s20, 65536
    s_waitcnt lgkmcnt(0)
    buffer_store_dwordx4 v[16:19], v2, s[12:15], s20 offen
    buffer_store_dwordx4 v[20:23], v2, s[12:15], s20 offen offset:64
    buffer_store_dwordx4 v[24:27], v2, s[12:15], s21 offen
    buffer_store_dwordx4 v[28:31], v2, s[12:15], s21 offen offset:64
    """)
    st.stamp(); st.dump(22)
    a("s_endpgm")

def gemm(a, st):
    ACC = 16
    AF = 112
    BF = [144, 156]
    a(f"""
    s_setprio {os.environ.get('GPRIO','0')}
    s_and_b32 s16, s2, 7             ; xcd
    s_lshr_b32 s17, s2, 3            ; idx
    s_and_b32 s18, s16, 1
    s_lshl_b32 s18, s18, 3
    s_and_b32 s19, s17, 7
    s_add_u32 s18, s18, s19          ; rb
    s_lshr_b32 s19, s16, 1
    s_lshl_b32 s19, s19, 2
    s_lshr_b32 s20, s17, 3
    s_add_u32 s19, s19, s20          ; cb
    s_mov_b32 s4, s32
    s_mov_b32 s5, s33
    s_mov_b32 s6, 0x400000
    s_mov_b32 s7, 0x00020000
    s_mov_b32 s8, s34
    s_mov_b32 s9, s35
    s_mov_b32 s10, 0x600000
    s_mov_b32 s11, 0x00020000
    s_and_b32 s20, s22, 1
    s_cmp_eq_u32 s20, 0
    s_cselect_b32 s84, s32, s34
    s_cselect_b32 s85, s33, s35
    s_cselect_b32 s86, 0x400000, s10
    s_mov_b32 s87, 0x00020000
    s_mov_b32 s21, {128*6144}
    s_cselect_b32 s89, 256, s21
    s_and_b32 s20, s16, 1
    s_lshl_b32 s20, s20, 10
    s_lshl_b32 s21, s17, 5
    s_add_u32 s20, s20, s21
    v_and_b32 v9, 31, v1
    v_add_u32 v9, s20, v9
    v_lshlrev_b32 v9, 11, v9
    v_lshrrev_b32 v10, 5, v1
    v_lshlrev_b32 v10, 7, v10
    v_add_u32 v9, v9, v10
    s_lshl_b32 s20, s17, 2
    v_lshrrev_b32 v10, 4, v1
    v_add_u32 v10, s20, v10
    v_mul_u32_u24 v10, 6144, v10
    v_and_b32 v11, 15, v1
    v_min_u32 v11, 11, v11
    v_lshrrev_b32 v12, 2, v11
    v_lshlrev_b32 v12, 11, v12
    v_and_b32 v11, 3, v11
    v_lshlrev_b32 v11, 7, v11
    v_add3_u32 v10, v10, v11, v12
    s_lshr_b32 s20, s16, 1
    s_lshl_b32 s20, s20, 9
    v_add_u32 v10, s20, v10
    s_and_b32 s20, s22, 1
    v_cmp_eq_u32 vcc, 0, s20
    v_cndmask_b32 v219, v10, v9, vcc
    s_mov_b32 s88, 0
    s_lshl_b32 s20, s18, 7
    s_lshl_b32 s21, s22, 5
    s_add_u32 s20, s20, s21
    v_lshrrev_b32 v2, 3, v1
    v_add_u32 v2, s20, v2
    v_lshlrev_b32 v2, 11, v2
    v_and_b32 v3, 7, v1
    v_lshrrev_b32 v4, 4, v1
    v_xor_b32 v3, v3, v4
    v_lshlrev_b32 v3, 4, v3
    v_add_u32 v216, v2, v3
    v_xor_b32 v3, 64, v3
    v_add_u32 v217, v2, v3
    v_add_u32 v217, 16384, v217
    s_lshl_b32 s20, s22, 3
    v_lshrrev_b32 v3, 3, v1
    v_add_u32 v3, s20, v3
    v_mul_u32_u24 v3, 6144, v3
    s_lshl_b32 s20, s19, 7
    v_add_u32 v3, s20, v3
    v_and_b32 v4, 7, v1
    v_lshrrev_b32 v5, 4, v1
    v_and_b32 v5, 1, v5
    v_lshlrev_b32 v5, 2, v5
    v_xor_b32 v4, v4, v5
    v_lshlrev_b32 v4, 4, v4
    v_add_u32 v218, v3, v4
    s_lshl_b32 s62, s22, 12          ; A m0 base
    s_lshl_b32 s63, s22, 10
    s_add_u32 s63, s63, {BB}         ; B m0 base
    s_mov_b32 s27, 0
    s_mov_b32 s28, 0
    """)
    def dmaA(slot):
        o = slot * 16384
        return [
            f"s_add_u32 m0, s62, {o}\ns_add_u32 s31, s27, 32768\nbuffer_load_dwordx4 v216, s[4:7], s27 offen lds",
            f"s_add_u32 m0, s62, {o+1024}\ns_nop 0\nbuffer_load_dwordx4 v217, s[4:7], s27 offen lds",
            f"s_add_u32 m0, s62, {o+2048}\ns_nop 0\nbuffer_load_dwordx4 v216, s[4:7], s31 offen lds",
            f"s_add_u32 m0, s62, {o+3072}\ns_add_u32 s27, s27, 128\nbuffer_load_dwordx4 v217, s[4:7], s31 offen lds\ns_cmp_lt_u32 s27, 2048\ns_cselect_b32 s27, s27, 0x10000000",
        ]
    def dmaB(slot):
        o = slot * BS
        return [
            f"s_add_u32 m0, s63, {o}\ns_add_u32 s30, s28, 2048\nbuffer_load_dwordx4 v218, s[8:11], s28 offen lds",
            f"s_add_u32 m0, s63, {o+4096}\ns_add_u32 s31, s28, 4096\nbuffer_load_dwordx4 v218, s[8:11], s30 offen lds",
            f"s_add_u32 m0, s63, {o+8192}\ns_add_u32 s28, s28, 196608\nbuffer_load_dwordx4 v218, s[8:11], s31 offen lds",
        ]
    PF = "buffer_load_dword v220, v219, s[84:87], s88 offen\ns_add_u32 s88, s88, s89"
    ORD = os.environ.get('ORD', '0')
    if ORD == '0':
        pre, post = dmaA(0) + dmaB(0) + [PF] * NPF + dmaB(1) + dmaB(2) + dmaA(1), []
        wait0 = 10 + NPF
    elif ORD == '1':
        pre, post = dmaA(0) + dmaB(0) + dmaB(1), [PF] * NPF + dmaB(2) + dmaA(1)
        wait0 = 3
    else:
        pre, post = dmaA(0) + dmaB(0) + dmaB(1) + [PF] * NPF, dmaB(2) + dmaA(1)
        wait0 = 3 + NPF
    for d in pre: a(d)
    a(f"""
    s_and_b32 s23, s22, 1            ; rh
    s_lshr_b32 s24, s22, 1           ; hs
    v_and_b32 v10, 31, v1
    v_lshrrev_b32 v11, 5, v1
    s_lshl_b32 s20, s23, 6
    v_add_u32 v12, s20, v10
    v_lshlrev_b32 v12, 7, v12
    v_lshrrev_b32 v13, 1, v10
    v_and_b32 v13, 7, v13
    v_xor_b32 v14, v11, v13
    v_lshlrev_b32 v14, 4, v14
    v_add_u32 v4, v12, v14
    v_xor_b32 v5, 32, v4
    v_xor_b32 v6, 64, v4
    v_xor_b32 v7, 96, v4
    v_lshrrev_b32 v10, 5, v1
    v_lshlrev_b32 v10, 3, v10
    v_and_b32 v11, 15, v1
    v_lshrrev_b32 v11, 2, v11
    v_add_u32 v10, v10, v11
    v_lshlrev_b32 v10, 7, v10
    v_lshrrev_b32 v12, 4, v1
    v_and_b32 v12, 1, v12
    v_lshlrev_b32 v12, 1, v12
    v_and_b32 v13, 3, v1
    v_lshrrev_b32 v14, 1, v13
    v_add_u32 v12, v12, v14
    s_lshl_b32 s20, s24, 2
    v_add_u32 v12, s20, v12
    v_lshrrev_b32 v11, 1, v11
    v_and_b32 v11, 1, v11
    v_lshlrev_b32 v11, 2, v11
    v_xor_b32 v12, v12, v11
    v_lshlrev_b32 v12, 4, v12
    v_add_u32 v10, v10, v12
    v_and_b32 v13, 1, v13
    v_lshlrev_b32 v13, 3, v13
    v_add_u32 v10, v10, v13
    v_add_u32 v8, {BB}, v10
    """)
    for i in range(96): a(f"v_mov_b32 v{ACC+i}, 0")
    def readsA(aslot, t):
        F = AF + 8 * t
        return [f"ds_read_b128 v[{F+4*mb}:{F+4*mb+3}], v{4+t} offset:{aslot*16384 + 4096*mb}" for mb in range(2)]
    def readsB(F, bslot, ks):
        out = []
        for s in range(3):
            for h in range(2):
                off = bslot * BS + s * 4096 + (16 * ks + 4 * h) * 128
                out.append(f"ds_read_b64_tr_b16 v[{F+4*s+2*h}:{F+4*s+2*h+1}], v8 offset:{off}")
        return out
    def mfmas(t, FB):
        out = []
        for mb in range(2):
            A = f"v[{AF+8*t+4*mb}:{AF+8*t+4*mb+3}]"
            for j in range(3):
                B = f"v[{FB+4*j}:{FB+4*j+3}]"
                c = ACC + 16 * (3 * mb + j)
                C = f"v[{c}:{c+15}]"
                if j == 0: out.append(f"v_mfma_f32_32x32x16_bf16 {C}, {B}, {A}, {C}")
                else: out.append(f"v_mfma_f32_32x32x16_bf16 {C}, {A}, {B}, {C}")
        return out
    def interleave(ms, others):
        n = len(others); k = 0
        per = [3, 3, 3, 2, 2, 2]
        for i, m in enumerate(ms):
            a(m)
            for _ in range(per[i]):
                if k < n: a(others[k]); k += 1
        while k < n: a(others[k]); k += 1
    a(f"s_waitcnt vmcnt({wait0})\ns_barrier")
    st.stamp()
    for r in readsA(0, 0) + readsB(BF[0], 0, 0): a(r)
    for d in post: a(d)
    a("s_mov_b32 s3, 0")
    a.label("L_g1_loop")
    for jj in range(2):
        asl = jj
        b0, b1 = 2 * jj, 2 * jj + 1
        a(f"s_waitcnt vmcnt({7 if jj == 0 else 8}) lgkmcnt(0)\ns_barrier")
        interleave(mfmas(0, BF[0]), readsB(BF[1], b0, 1) + readsA(asl, 1) + readsA(asl, 2) + readsA(asl, 3) + dmaB((b0 + 3) % 4) + ([PF] if jj == 0 else []))
        a("s_waitcnt lgkmcnt(0)")
        interleave(mfmas(1, BF[1]), readsB(BF[0], b1, 0))
        a(f"s_waitcnt vmcnt({4 if jj == 0 else 3}) lgkmcnt(0)\ns_barrier")
        interleave(mfmas(2, BF[0]), readsB(BF[1], b1, 1) + dmaB((b1 + 3) % 4) + dmaA(asl)[0:2])
        a("s_waitcnt lgkmcnt(0)")
        interleave(mfmas(3, BF[1]), readsB(BF[0], (b1 + 1) % 4, 0) + readsA(1 - asl, 0) + dmaA(asl)[2:4])
    a("s_add_u32 s3, s3, 1\ns_cmp_lt_u32 s3, 8\ns_cbranch_scc1 L_g1_loop")
    a("s_waitcnt vmcnt(0) lgkmcnt(0)")
    st.stamp()
    a("""
    s_mov_b32 s40, 0x3fb8aa3b
    s_mov_b32 s41, 0x3fb8aa3b
    s_mov_b32 s42, 0x358637bd
    s_mov_b32 s43, 0x358637bd
    s_lshl_b32 s44, s19, 1
    s_add_u32 s44, s44, s24
    v_lshlrev_b32 v10, 4, v1
    v_mov_b32 v12, 0x3f803f80
    v_mov_b32 v13, 0x3f803f80
    v_mov_b32 v14, 0x3f803f80
    v_mov_b32 v15, 0x3f803f80
    """)
    T = 152; PK = 160; KV = 112; ZA = 128
    def phi(src, dst):
        for p in range(8):
            x = src + 2 * p
            t = T + 4 * (p % 2)
            a(f"""
            v_pk_mul_f32 v[{t}:{t+1}], v[{x}:{x+1}], s[40:41]
            v_max_f32 v{t+2}, 0, v{x}
            v_max_f32 v{t+3}, 0, v{x+1}
            v_exp_f32_e64 v{t}, v{t} clamp
            v_exp_f32_e64 v{t+1}, v{t+1} clamp
            v_pk_add_f32 v[{t+2}:{t+3}], v[{t+2}:{t+3}], s[42:43]
            v_pk_add_f32 v[{t}:{t+1}], v[{t}:{t+1}], v[{t+2}:{t+3}]
            v_cvt_pk_bf16_f32 v{dst+p}, v{t}, v{t+1}
            """)
    for mb in range(2):
        q, k, v = (ACC + 16 * (3 * mb + j) for j in range(3))
        phi(k, PK)
        for p in range(8):
            a(f"v_cvt_pk_bf16_f32 v{PK+8+p}, v{v+2*p}, v{v+2*p+1}")
        for t in range(2):
            c = "0" if (mb == 0 and t == 0) else None
            Ckv = f"v[{KV}:{KV+15}]"; Cz = f"v[{ZA}:{ZA+15}]"
            a(f"v_mfma_f32_32x32x16_bf16 {Ckv}, v[{PK+4*t}:{PK+4*t+3}], v[{PK+8+4*t}:{PK+8+4*t+3}], {c or Ckv}")
            a(f"v_mfma_f32_32x32x16_bf16 {Cz}, v[{PK+4*t}:{PK+4*t+3}], v[12:15], {c or Cz}")
        phi(q, PK + 16)
        a(f"""
        s_lshl_b32 s45, s18, 2
        s_lshl_b32 s46, s23, 1
        s_add_u32 s45, s45, s46
        s_add_u32 s45, s45, {mb}
        s_lshl_b32 s45, s45, 5
        s_add_u32 s45, s45, s44
        s_lshl_b32 s45, s45, 11
        s_add_u32 s45, s45, {WS_PQ}
        buffer_store_dwordx4 v[{PK+16}:{PK+19}], v10, s[12:15], s45 offen
        buffer_store_dwordx4 v[{PK+20}:{PK+23}], v10, s[12:15], s45 offen offset:1024
        """)
    st.stamp()
    a("s_barrier")
    a(f"""
    s_lshl_b32 s45, s24, 13
    v_add_u32 v11, s45, v10
    s_cmp_eq_u32 s23, 0
    s_cbranch_scc1 L_g1_red_wait
    """)
    for j in range(4):
        a(f"ds_write_b128 v11, v[{KV+4*j}:{KV+4*j+3}] offset:{1024*j}")
    for j in range(4):
        a(f"ds_write_b128 v11, v[{ZA+4*j}:{ZA+4*j+3}] offset:{4096+1024*j}")
    a("s_waitcnt lgkmcnt(0)\ns_barrier")
    st.dump(22)
    a("s_endpgm")
    a.label("L_g1_red_wait")
    a("s_barrier")
    for j in range(8):
        a(f"ds_read_b128 v[{ACC+4*j}:{ACC+4*j+3}], v11 offset:{1024*j}")
    a("s_waitcnt lgkmcnt(0)")
    for j in range(16):
        a(f"v_pk_add_f32 v[{KV+2*j}:{KV+2*j+1}], v[{KV+2*j}:{KV+2*j+1}], v[{ACC+2*j}:{ACC+2*j+1}]")
    a(f"""
    s_lshl_b32 s45, s44, 4
    s_add_u32 s45, s45, s18
    s_lshl_b32 s46, s45, 12
    s_add_u32 s46, s46, {WS_KVP}
    s_lshl_b32 s47, s45, 7
    s_add_u32 s47, s47, {WS_ZP}
    """)
    for j in range(4):
        a(f"buffer_store_dwordx4 v[{KV+4*j}:{KV+4*j+3}], v10, s[12:15], s46 offen offset:{1024*j}")
    a("""
    v_and_b32 v11, 31, v1
    v_lshlrev_b32 v12, 1, v1
    v_cmp_eq_u32 vcc, 0, v11
    s_and_saveexec_b64 s[48:49], vcc
    """)
    for j in range(4):
        a(f"buffer_store_dwordx4 v[{ZA+4*j}:{ZA+4*j+3}], v12, s[12:15], s47 offen offset:{16*j}")
    st.stamp(); st.dump(22)
    a("s_endpgm")
```

```python
from asmlib import Asm
from layout import *
from stamps import Stamps
from k3 import VM
import os

CS = 4288
KP = 4 * CS
WR = KP + 4608 + 64
PB = 4 * WR
ZB = PB + 65536
KVX = ZB + 2048
ZS = KVX + 2048
LDS = ZS + 512
TP = 144
SC = "sc1"

def gen(a: Asm):
    st = Stamps(a, 1)
    a(f"""
    s_cmp_ge_u32 s2, 256
    s_cbranch_scc1 L_k2_end
    s_load_dwordx2 s[36:37], s[0:1], 96      ; ws
    s_load_dwordx2 s[38:39], s[0:1], 72      ; D_skip
    s_load_dwordx2 s[40:41], s[0:1], 16      ; wo
    s_load_dwordx2 s[44:45], s[0:1], 80      ; out
    v_and_b32 v1, 63, v0
    v_lshrrev_b32 v2, 6, v0
    s_nop 0
    v_readfirstlane_b32 s22, v2
    s_and_b32 s16, s2, 7
    s_lshr_b32 s17, s2, 3
    s_and_b32 s18, s16, 3
    s_lshl_b32 s18, s18, 2
    s_and_b32 s19, s17, 3
    s_add_u32 s18, s18, s19          ; rb
    s_lshr_b32 s19, s16, 2
    s_lshl_b32 s19, s19, 3
    s_lshr_b32 s20, s17, 2
    s_add_u32 s19, s19, s20          ; cb
    s_lshl_b32 s23, s2, 2
    s_add_u32 s23, s23, s22          ; channel d
    s_mul_i32 s26, s22, {WR}
    s_lshl_b32 s24, s23, 12          ; d*4096
    v_lshlrev_b32 v2, 4, v1          ; lane*16
    s_waitcnt lgkmcnt(0)
    s_mov_b32 s12, s36
    s_mov_b32 s13, s37
    s_mov_b32 s14, 0x10000000
    s_mov_b32 s15, 0x00020000
    s_add_u32 s4, s36, s24
    s_addc_u32 s5, s37, 0
    s_add_u32 s4, s4, {WS_UT}
    s_addc_u32 s5, s5, 0
    s_mov_b32 s6, 4096
    s_mov_b32 s7, 0x00020000
    """)
    st.stamp()
    ACC = 16; S0 = 48; S1 = 120
    for it in range(4):
        b = S0 + 12 * it
        a(f"""
        buffer_load_dwordx4 v[{b}:{b+3}], v2, s[4:7], 0 offen offset:{1024*it}
        buffer_load_dwordx4 v[{b+4}:{b+7}], v2, s[4:7], 0 offen offset:{1024*it+4}
        buffer_load_dwordx2 v[{b+8}:{b+9}], v2, s[4:7], 0 offen offset:{1024*it+16}
        """)
    a(f"""
    s_and_b32 s20, s2, 31            ; head
    s_lshr_b32 s21, s2, 5
    s_lshl_b32 s25, s20, 16
    s_lshl_b32 s27, s22, 14
    s_add_u32 s25, s25, s27
    s_add_u32 s25, s25, {WS_KVP}
    s_add_u32 s27, s27, {PB}
    """)
    for j in range(16):
        a(f"s_add_u32 m0, s27, {1024*j}\ns_add_u32 s29, s25, {1024*j}\nbuffer_load_dwordx4 v2, s[12:15], s29 offen lds")
    a(f"""
    s_and_b32 s27, s22, 1
    s_lshl_b32 s27, s27, 10
    s_lshl_b32 s25, s20, 11
    s_add_u32 s25, s25, s27
    s_add_u32 s25, s25, {WS_ZP}
    s_add_u32 m0, s27, {ZB}
    s_nop 0
    buffer_load_dwordx4 v2, s[12:15], s25 offen lds
    s_lshl_b32 s27, s21, 3
    s_lshl_b32 s25, s22, 1
    s_add_u32 s27, s27, s25
    s_lshl_b32 s27, s27, 5
    s_add_u32 s27, s27, s20
    s_lshl_b32 s27, s27, 11
    s_add_u32 s28, s27, {WS_PQ}
    s_add_u32 s31, s27, {WS_O}
    s_add_u32 s29, s28, 65536
    buffer_load_dwordx4 v[176:179], v2, s[12:15], s28 offen
    buffer_load_dwordx4 v[180:183], v2, s[12:15], s28 offen offset:1024
    buffer_load_dwordx4 v[184:187], v2, s[12:15], s29 offen
    buffer_load_dwordx4 v[188:191], v2, s[12:15], s29 offen offset:1024
    s_add_u32 s27, s24, {WS_KT}
    s_add_u32 s28, s26, {KP+512}
    """)
    for i in range(4):
        a(f"s_add_u32 m0, s28, {1024*i}\ns_add_u32 s29, s27, {1024*i}\nbuffer_load_dwordx4 v2, s[12:15], s29 offen lds")
    a(f"""
    s_mov_b32 s8, s38
    s_mov_b32 s9, s39
    s_mov_b32 s10, 2048
    s_mov_b32 s11, 0x00020000
    s_lshl_b32 s25, s23, 1
    v_mov_b32 v3, s25
    buffer_load_ushort v14, v3, s[8:11], 0 offen
    s_add_u32 s48, s36, {WS_FLG}
    s_addc_u32 s49, s37, 0
    s_mov_b32 s50, 4096
    s_mov_b32 s51, 0x00020000
    s_mov_b32 s52, s40
    s_mov_b32 s53, s41
    s_mov_b32 s54, 0x200000
    s_mov_b32 s55, 0x00020000
    s_mov_b32 s56, s44
    s_mov_b32 s57, s45
    s_mov_b32 s58, 0x800000
    s_mov_b32 s59, 0x00020000
    v_mov_b32 v4, 0
    v_mov_b32 v5, 0
    v_mov_b32 v6, 0
    v_mov_b32 v7, 0
    v_lshlrev_b32 v3, 3, v1
    v_add_u32 v3, s26, v3
    ds_write_b64 v3, v[4:5] offset:{KP}
    v_and_b32 v8, 7, v1
    v_lshlrev_b32 v8, 3, v8
    v_add_u32 v8, s26, v8
    ds_write_b64 v8, v[4:5] offset:{KP+4608}
    v_and_b32 v3, 31, v1
    v_lshrrev_b32 v8, 3, v3
    v_and_b32 v3, 7, v3
    v_add_u32 v9, 256, v3
    v_cmp_gt_u32 vcc, 2, v3
    v_cndmask_b32 v3, v9, v3, vcc
    v_lshlrev_b32 v3, 4, v3
    v_mul_u32_u24 v8, {CS}, v8
    v_add3_u32 v3, v3, v8, s26
    ds_write_b128 v3, v[4:7]
    v_add_u32 v3, s26, v2
    """)
    TOT = 12 + 17 + 4 + 4 + 1
    E = 100
    for it in range(4):
        b = S0 + 12 * it
        e = E + 8 * (it % 2)
        a(f"s_waitcnt vmcnt({TOT - 3*(it+1)})")
        d = [b, b + 1, b + 2, b + 3, b + 8, b + 9]
        for k in range(4):
            a(f"v_alignbyte_b32 v{e+k}, v{d[k+1]}, v{d[k]}, 2")
        for k in range(4):
            a(f"v_alignbyte_b32 v{e+4+k}, v{d[k+2]}, v{d[k+1]}, 2")
        o = 32 + 1024 * it
        a(f"""
        ds_write_b128 v3, v[{b}:{b+3}] offset:{o}
        ds_write_b128 v3, v[{e}:{e+3}] offset:{CS+o}
        ds_write_b128 v3, v[{b+4}:{b+7}] offset:{2*CS+o}
        ds_write_b128 v3, v[{e+4}:{e+7}] offset:{3*CS+o}
        """)
    a(f"""
    s_lshl_b32 s27, s22, 10
    s_add_u32 s27, s27, {PB}
    v_add_u32 v3, s27, v2
    v_lshlrev_b32 v4, 2, v1
    v_add_u32 v4, {ZB}, v4
    s_waitcnt vmcnt(9)
    s_barrier
    """)
    st.stamp()
    for p in range(8):
        a(f"ds_read_b32 v{112+p}, v4 offset:{256*p}")
    for p in range(16):
        a(f"ds_read_b128 v[{48+4*p}:{51+4*p}], v3 offset:{4096*p}")
    a(f"""
    s_waitcnt lgkmcnt(15)
    v_add_f32 v112, v112, v113
    v_add_f32 v114, v114, v115
    v_add_f32 v116, v116, v117
    v_add_f32 v118, v118, v119
    v_add_f32 v112, v112, v114
    v_add_f32 v116, v116, v118
    v_add_f32 v112, v112, v116
    v_mov_b32 v113, v112
    s_nop 1
    v_permlane32_swap_b32 v112, v113
    s_nop 1
    v_add_f32 v112, v112, v113
    s_lshl_b32 s27, s22, 7
    s_add_u32 s27, s27, {ZS}
    v_and_b32 v5, 31, v1
    v_lshlrev_b32 v5, 2, v5
    v_add_u32 v5, s27, v5
    ds_write_b32 v5, v112
    v_lshrrev_b32 v5, 5, v1
    v_lshlrev_b32 v5, 6, v5
    v_add_u32 v5, s27, v5
    s_waitcnt lgkmcnt(0)
    ds_read_b128 v[120:123], v5
    ds_read_b128 v[124:127], v5 offset:16
    ds_read_b128 v[128:131], v5 offset:32
    ds_read_b128 v[132:135], v5 offset:48
    """)
    step = 1
    while step < 16:
        for p in range(0, 16, 2 * step):
            for h in range(2):
                x = 48 + 4 * p + 2 * h; y = 48 + 4 * (p + step) + 2 * h
                a(f"v_pk_add_f32 v[{x}:{x+1}], v[{x}:{x+1}], v[{y}:{y+1}]")
        step *= 2
    a(f"""
    v_cvt_pk_bf16_f32 v52, v48, v49
    v_cvt_pk_bf16_f32 v53, v50, v51
    v_lshlrev_b32 v6, 5, v1
    v_add_u32 v6, {KVX}, v6
    s_lshl_b32 s27, s22, 3
    v_add_u32 v7, s27, v6
    ds_write_b64 v7, v[52:53]
    s_waitcnt lgkmcnt(0)
    s_barrier
    ds_read_b128 v[96:99], v6
    ds_read_b128 v[100:103], v6 offset:16
    """)
    KA = 96
    for j in range(8):
        a(f"v_cvt_pk_bf16_f32 v{KA+8+j}, v{120+2*j}, v{121+2*j}")
    a("s_mov_b32 s30, 0x358637bd\ns_waitcnt vmcnt(5) lgkmcnt(0)")
    PQ = 176; NUM = [16, 48]; DEN = [32, 64]
    for r in range(2):
        p = PQ + 8 * r
        N = f"v[{NUM[r]}:{NUM[r]+15}]"; Dn = f"v[{DEN[r]}:{DEN[r]+15}]"
        a(f"""
        v_mfma_f32_32x32x16_bf16 {Dn}, v[{KA+8}:{KA+11}], v[{p}:{p+3}], 0
        v_mfma_f32_32x32x16_bf16 {N}, v[{KA}:{KA+3}], v[{p}:{p+3}], 0
        v_mfma_f32_32x32x16_bf16 {Dn}, v[{KA+12}:{KA+15}], v[{p+4}:{p+7}], {Dn}
        v_mfma_f32_32x32x16_bf16 {N}, v[{KA+4}:{KA+7}], v[{p+4}:{p+7}], {N}
        """)
    a(f"""
    v_lshrrev_b32 v13, 3, v1
    v_lshlrev_b32 v13, 11, v13
    s_lshl_b32 s3, s19, 7
    v_add_u32 v13, s3, v13
    v_and_b32 v8, 7, v1
    v_lshrrev_b32 v9, 4, v1
    v_and_b32 v9, 1, v9
    v_lshlrev_b32 v9, 2, v9
    v_xor_b32 v8, v8, v9
    v_lshlrev_b32 v8, 4, v8
    v_add_u32 v13, v13, v8
    """)
    for r in range(2):
        p = PQ + 8 * r; Nn = NUM[r]; Dd = DEN[r]
        a(f"""
        v_cvt_pk_bf16_f32 v4, v{Dd}, v{Dd}
        v_lshlrev_b32 v4, 16, v4
        v_add_f32 v4, s30, v4
        v_cvt_pk_bf16_f32 v4, v4, v4
        v_lshlrev_b32 v4, 16, v4
        v_rcp_f32 v4, v4
        """)
        for j in range(8): a(f"v_pk_mul_f32 v[{Nn+2*j}:{Nn+2*j+1}], v[{Nn+2*j}:{Nn+2*j+1}], v[4:5] op_sel_hi:[1,0]")
        for j in range(8): a(f"v_cvt_pk_bf16_f32 v{p+j}, v{Nn+2*j}, v{Nn+2*j+1}")
        a(f"""
        buffer_store_dwordx4 v[{p}:{p+3}], v2, s[12:15], s31 offen
        buffer_store_dwordx4 v[{p+4}:{p+7}], v2, s[12:15], s31 offen offset:1024
        s_add_u32 s31, s31, 65536
        """)
    def chunk_dma(lds_sgpr, chunk_sgpr_bytes):
        for j in range(16):
            a(f"s_add_u32 m0, s{lds_sgpr}, {1024*j}\ns_add_u32 s29, s{chunk_sgpr_bytes}, {16384*j}\nbuffer_load_dwordx4 v13, s[52:55], s29 offen lds")
    a(f"""
    s_lshl_b32 s27, s22, 14
    s_add_u32 s27, s27, {PB}
    s_lshl_b32 s28, s22, 18
    """)
    slab = [f"s_add_u32 m0, s27, {1024*j}\ns_add_u32 s29, s28, {16384*j}\nbuffer_load_dwordx4 v13, s[52:55], s29 offen lds" for j in range(16)]
    st.stamp()
    a(f"""
    v_and_b32 v4, 15, v1
    v_lshrrev_b32 v5, 4, v1
    v_sub_u32 v6, 3, v4
    v_and_b32 v6, 3, v6
    v_mul_u32_u24 v6, {CS}, v6
    v_lshrrev_b32 v7, 2, v4
    v_lshlrev_b32 v7, 3, v7
    v_lshlrev_b32 v8, 4, v5
    v_add_u32 v6, v6, v8
    v_sub_u32 v6, v6, v7
    v_add_u32 v6, 24, v6
    v_add_u32 v6, s26, v6
    v_lshlrev_b32 v7, 5, v4
    v_add3_u32 v7, v7, v8, s26
    v_add_u32 v7, {KP}, v7
    s_lshl_b32 s3, s21, 8
    v_mov_b32 v11, s3
    v_mov_b32 v12, 1
    """)
    for i in range(32): a(f"v_mov_b32 v{ACC+i}, 0")
    a("s_waitcnt vmcnt(4) lgkmcnt(0)")
    def reads(S, rho):
        out = []
        ii = range(9) if rho == 0 else range(8)
        ww = range(-1, 8) if rho == 0 else range(8)
        ra, rb = [], []
        for i in ii:
            q = rho + 8 * i
            off = 64 * (64 - q)
            ra.append([f"ds_read_b64 v[{S+4*i}:{S+4*i+1}], v6 offset:{off}", f"ds_read_b64 v[{S+4*i+2}:{S+4*i+3}], v6 offset:{off+8}"])
        for w in ww:
            r = 8 * w - rho
            rb.append([f"ds_read_b128 v[{S+36+4*(w+1)}:{S+36+4*(w+1)+3}], v7 offset:{64*(r+8)}"])
        for x, y in zip(ra, rb):
            out += y + x
        return out
    def mfmas(S, rho):
        out = []
        ii = range(9) if rho == 0 else range(8)
        ww = range(-1, 8) if rho == 0 else range(8)
        for i in ii:
            for w in ww:
                t = i + w
                if 0 <= t <= 7:
                    C = f"v[{ACC+4*t}:{ACC+4*t+3}]"
                    out.append(f"v_mfma_f32_16x16x32_bf16 {C}, v[{S+4*i}:{S+4*i+3}], v[{S+36+4*(w+1)}:{S+36+4*(w+1)+3}], {C}")
        return out
    for r in reads(S0, 0): a(r)
    for rho in range(8):
        S = S0 if rho % 2 == 0 else S1
        Sn = S1 if rho % 2 == 0 else S0
        a("s_waitcnt lgkmcnt(0)")
        if rho == 2:
            a("""
            s_waitcnt vmcnt(16)
            v_cmp_eq_u32 vcc, 0, v1
            s_and_saveexec_b64 s[60:61], vcc
            buffer_atomic_add v12, v11, s[48:51], 0 offen
            s_mov_b64 exec, -1
            """)
        ms = mfmas(S, rho)
        rd = reads(Sn, rho + 1) if rho < 7 else []
        if rho == 0: rd = rd + slab[0:8]
        if rho == 1: rd = rd + slab[8:16]
        if rho == 6: rd = rd + ["buffer_load_dword v10, v3, s[48:51], 0 offen sc1"]
        if rho == 7:
            a.label("L_k23_poll_o")
            a("""
            s_waitcnt vmcnt(0)
            v_readfirstlane_b32 s3, v10
            s_nop 1
            s_cmp_ge_u32 s3, 128
            s_cbranch_scc1 L_k23_o_ok
            s_sleep 32
            buffer_load_dword v10, v3, s[48:51], 0 offen sc1
            s_branch L_k23_poll_o
            """)
            a.label("L_k23_o_ok")
            rd = [f"s_add_u32 s29, s28, {n*1024}\nbuffer_load_dwordx4 v[{64+4*n}:{67+4*n}], v2, s[12:15], s29 offen {SC}" for n in range(8)]
        k = 0
        for m in ms:
            a(m)
            if k < len(rd): a(rd[k]); k += 1
        while k < len(rd): a(rd[k]); k += 1
        if rho == 2:
            a(f"""
            s_lshl_b32 s28, s18, 2
            s_add_u32 s28, s28, s22
            s_lshl_b32 s28, s28, 16
            s_add_u32 s28, s28, {WS_O}
            s_lshr_b32 s3, s18, 1
            s_lshl_b32 s3, s3, 8
            v_mov_b32 v3, s3
            """)
    st.stamp()
    a(f"""
    v_lshlrev_b32 v8, 5, v4
    v_lshlrev_b32 v9, 3, v5
    v_add_u32 v8, v8, v9
    v_sub_u32 v9, {2*(2060-1792)}, v8
    v_add_u32 v9, s26, v9
    v_lshlrev_b32 v14, 16, v14
    v_mov_b32 v15, v14
    s_add_u32 s27, s24, {WS_YT}
    s_mov_b32 s30, 0xffff0000
    """)
    U = 48
    for t in range(8):
        a(f"ds_read_b64 v[{U+2*t}:{U+2*t+1}], v9 offset:{512*(7-t)}")
    a("s_waitcnt lgkmcnt(0)")
    for n in range(8):
        a(f"s_add_u32 s29, s28, {(8+n)*1024}\nbuffer_load_dwordx4 v[{96+4*n}:{99+4*n}], v2, s[12:15], s29 offen {SC}")
    a(f"s_lshl_b32 s25, s22, 18\ns_add_u32 s25, s25, {4<<18}")
    chunk_dma(26, 25)
    for t in range(8):
        T = 128 + 16 * (t % 4)
        y = ACC + 4 * t
        u0, u1 = U + 2 * t, U + 2 * t + 1
        a(f"""
        v_and_b32 v{T}, s30, v{u1}
        v_lshlrev_b32 v{T+1}, 16, v{u1}
        v_and_b32 v{T+2}, s30, v{u0}
        v_lshlrev_b32 v{T+3}, 16, v{u0}
        v_pk_fma_f32 v[{T}:{T+1}], v[{T}:{T+1}], v[14:15], v[{y}:{y+1}]
        v_pk_fma_f32 v[{T+2}:{T+3}], v[{T+2}:{T+3}], v[14:15], v[{y+2}:{y+3}]
        v_cvt_pk_bf16_f32 v{T+10}, v{T}, v{T+1}
        v_cvt_pk_bf16_f32 v{T+11}, v{T+2}, v{T+3}
        buffer_store_dwordx2 v[{T+10}:{T+11}], v8, s[12:15], s27 offen offset:{512*t}
        """)
    st.stamp()
    gemm2(a, st)
    a.label("L_k2_end")
    a("s_endpgm")
    return dict(vgpr=192, block=256, lds=LDS)

def gemm2(a, st):
    vm = VM(a)
    vm.q += ["A0"] * 8 + ["A1"] * 8 + ["D4"] * 16 + ["YS"] * 8
    a(f"""
    v_lshlrev_b32 v7, 4, v1
    s_lshr_b32 s3, s2, 5
    s_lshl_b32 s3, s3, 8
    s_add_u32 s3, s3, 2048
    v_mov_b32 v14, s3                ; y counter
    s_barrier
    """)
    st.stamp()
    AB = [64, 96, 128]
    def Aload(c):
        B = AB[c % 3]
        for n in range(8):
            off = (8 * c + n) * 1024
            vm.issue(f"A{c}", f"s_add_u32 s29, s28, {off}\nbuffer_load_dwordx4 v[{B+4*n}:{B+4*n+3}], v7, s[12:15], s29 offen {SC}")
    YR = 16
    TB = PB
    a(f"""
    s_lshr_b32 s23, s2, 5
    s_lshl_b32 s23, s23, 7
    s_and_b32 s24, s2, 31
    s_lshl_b32 s24, s24, 6
    v_lshrrev_b32 v4, 3, v0
    v_and_b32 v5, 7, v0
    v_lshlrev_b32 v5, 4, v5
    v_add_u32 v3, s23, v4
    v_lshlrev_b32 v3, 12, v3
    v_add_u32 v3, v3, v5
    s_lshl_b32 s25, s24, 1
    s_add_u32 s25, s25, {WS_YT}
    v_mul_u32_u24 v15, {TP}, v4
    v_add_u32 v15, v15, v5
    v_add_u32 v15, {TB}, v15
    v_and_b32 v2, 15, v1
    v_lshrrev_b32 v4, 2, v2
    v_and_b32 v5, 3, v2
    v_lshrrev_b32 v9, 4, v1
    v_lshlrev_b32 v8, 3, v9
    v_add_u32 v8, v8, v4
    s_lshl_b32 s26, s22, 5
    v_add_u32 v8, s26, v8
    v_mul_u32_u24 v8, {TP}, v8
    v_lshlrev_b32 v5, 3, v5
    v_add_u32 v8, v8, v5
    v_add_u32 v8, {TB}, v8
    v_add_u32 v2, s24, v2
    v_lshlrev_b32 v2, 12, v2
    v_lshlrev_b32 v9, 4, v9
    v_add_u32 v9, v2, v9
    s_lshl_b32 s26, s22, 6
    s_lshl_b32 s30, s23, 1
    s_add_u32 s26, s26, s30
    s_add_u32 s30, s26, 2048
    v_lshrrev_b32 v10, 5, v1
    v_lshlrev_b32 v10, 2, v10
    v_and_b32 v11, 15, v1
    v_lshrrev_b32 v11, 2, v11
    v_add_u32 v10, v10, v11
    v_lshlrev_b32 v10, 7, v10
    v_lshrrev_b32 v6, 4, v1
    v_and_b32 v6, 1, v6
    v_lshlrev_b32 v6, 1, v6
    v_and_b32 v13, 3, v1
    v_lshrrev_b32 v2, 1, v13
    v_add_u32 v6, v6, v2
    v_lshrrev_b32 v11, 1, v11
    v_and_b32 v11, 1, v11
    v_lshlrev_b32 v11, 2, v11
    v_xor_b32 v6, v6, v11
    v_lshlrev_b32 v6, 4, v6
    v_add_u32 v10, v10, v6
    v_and_b32 v13, 1, v13
    v_lshlrev_b32 v13, 3, v13
    v_add_u32 v6, v10, v13
    v_xor_b32 v13, 64, v6            ; ct1
    v_add_u32 v10, {PB}, v6          ; chunks 0..3
    v_add_u32 v11, {PB}, v13
    v_add_u32 v4, {3*WR}, v6         ; chunk 7
    v_add_u32 v5, {3*WR}, v13
    """)
    ACC = 32; BB = 160
    def breads(n):
        c = n >> 3
        if c < 4: ra, base = (10, 11), c * 16384
        elif c < 7: ra, base = (6, 13), (c - 4) * WR
        else: ra, base = (4, 5), 0
        R = BB + 8 * (n % 4)
        out = []
        for ct in range(2):
            for hh in range(2):
                off = base + ((n & 7) * 16 + 8 * hh) * 128
                out.append(f"ds_read_b64_tr_b16 v[{R+4*ct+2*hh}:{R+4*ct+2*hh+1}], v{ra[ct]} offset:{off}")
        return out
    for n in range(3):
        for r in breads(n): a(r)
    vm.wait("A0")
    st.stamp()
    for n in range(64):
        c = n >> 3
        if n % 8 == 0 and n > 0:
            vm.wait(f"A{c}")
        if n in (28, 44):
            a("s_barrier")
        inflight = min(2, 63 - n) * 4
        a(f"s_waitcnt lgkmcnt({inflight})")
        R = BB + 8 * (n % 4)
        Af = AB[c % 3] + 4 * (n & 7)
        rd = breads(n + 3) if n + 3 < 64 else []
        for ct in range(2):
            C = f"v[{ACC+16*ct}:{ACC+16*ct+15}]"
            a(f"v_mfma_f32_32x32x16_bf16 {C}, v[{R+4*ct}:{R+4*ct+3}], v[{Af}:{Af+3}], {'0' if n == 0 else C}")
            for r in rd[2*ct:2*ct+2]: a(r)
        if n == 6:
            vm.wait("YS")
            a("v_cmp_eq_u32 vcc, 0, v1\ns_and_saveexec_b64 s[60:61], vcc")
            vm.issue("AT", "buffer_atomic_add v12, v14, s[48:51], 0 offen")
            a("s_mov_b64 exec, -1")
        if n == 28:
            for i in range(4):
                vm.issue("Y", f"s_add_u32 s26, s25, {i*32*4096}\nbuffer_load_dwordx4 v[{YR+4*i}:{YR+4*i+3}], v3, s[12:15], s26 offen {SC}")
        if n % 8 == 4:
            if c + 2 < 8: Aload(c + 2)
        if n == 26:
            a("s_cmp_lg_u32 s22, 0\ns_cbranch_scc1 L_k23_y_ok")
            a.label("L_k23_poll_y")
            a(f"""
            buffer_load_dword v2, v14, s[48:51], 0 offen sc1
            s_waitcnt vmcnt(0)
            v_readfirstlane_b32 s3, v2
            s_nop 1
            s_cmp_ge_u32 s3, 128
            s_cbranch_scc1 L_k23_y_ok
            s_sleep 8
            s_branch L_k23_poll_y
            """)
            a.label("L_k23_y_ok")
        if n == 40:
            for i in range(4):
                a(f"ds_write_b128 v15, v[{YR+4*i}:{YR+4*i+3}] offset:{32*i*TP}")
        if n == 45:
            for cg in range(4):
                for h in range(2):
                    a(f"ds_read_b64_tr_b16 v[{YR+4*cg+2*h}:{YR+4*cg+2*h+1}], v8 offset:{4*h*TP + 32*cg}")
        if n == 49:
            for cg in range(4):
                vm.issue("S", f"s_add_u32 s29, s30, {cg*16*4096}\nbuffer_store_dwordx4 v[{YR+4*cg}:{YR+4*cg+3}], v9, s[56:59], s29 offen NOSF")
    st.stamp()
    a(f"""
    v_and_b32 v2, 31, v1
    s_lshl_b32 s26, s18, 7
    s_lshl_b32 s29, s22, 5
    s_add_u32 s26, s26, s29
    v_add_u32 v2, s26, v2
    v_lshlrev_b32 v2, 12, v2
    v_lshrrev_b32 v3, 5, v1
    v_lshlrev_b32 v3, 3, v3
    v_add_u32 v2, v2, v3
    s_lshl_b32 s26, s19, 7
    """)
    for j in range(16):
        a(f"v_cvt_pk_bf16_f32 v{64+j}, v{ACC+2*j}, v{ACC+2*j+1}")
    for ct in range(2):
        for g4 in range(4):
            r = 64 + 8 * ct + 2 * g4
            a(f"buffer_store_dwordx2 v[{r}:{r+1}], v2, s[56:59], s26 offen offset:{64*ct+16*g4} NOSF")
    st.stamp(); st.dump(22)
    a("s_endpgm")
```

```python
from asmlib import Asm
from layout import *
from stamps import Stamps
from k3 import VM
import os

CS = 4288
KP = 4 * CS
WR = KP + 4608 + 64
PB = 4 * WR
ZB = PB + 65536
KVX = ZB + 2048
ZS = KVX + 2048
LDS = ZS + 512
TP = 144
SC = "sc1"

def gen(a: Asm):
    st = Stamps(a, 1)
    a(f"""
    s_cmp_ge_u32 s2, 256
    s_cbranch_scc1 L_k2_end
    s_load_dwordx2 s[36:37], s[0:1], 96      ; ws
    s_load_dwordx2 s[38:39], s[0:1], 72      ; D_skip
    s_load_dwordx2 s[40:41], s[0:1], 16      ; wo
    s_load_dwordx2 s[44:45], s[0:1], 80      ; out
    v_and_b32 v1, 63, v0
    v_lshrrev_b32 v2, 6, v0
    s_nop 0
    v_readfirstlane_b32 s22, v2
    s_and_b32 s16, s2, 7
    s_lshr_b32 s17, s2, 3
    s_and_b32 s18, s16, 3
    s_lshl_b32 s18, s18, 2
    s_and_b32 s19, s17, 3
    s_add_u32 s18, s18, s19          ; rb
    s_lshr_b32 s19, s16, 2
    s_lshl_b32 s19, s19, 3
    s_lshr_b32 s20, s17, 2
    s_add_u32 s19, s19, s20          ; cb
    s_lshl_b32 s23, s2, 2
    s_add_u32 s23, s23, s22          ; channel d
    s_mul_i32 s26, s22, {WR}
    s_lshl_b32 s24, s23, 12          ; d*4096
    v_lshlrev_b32 v2, 4, v1          ; lane*16
    s_waitcnt lgkmcnt(0)
    s_mov_b32 s12, s36
    s_mov_b32 s13, s37
    s_mov_b32 s14, 0x10000000
    s_mov_b32 s15, 0x00020000
    s_add_u32 s4, s36, s24
    s_addc_u32 s5, s37, 0
    s_add_u32 s4, s4, {WS_UT}
    s_addc_u32 s5, s5, 0
    s_mov_b32 s6, 4096
    s_mov_b32 s7, 0x00020000
    """)
    st.stamp()
    ACC = 16; S0 = 48; S1 = 120
    for it in range(4):
        b = S0 + 12 * it
        a(f"""
        buffer_load_dwordx4 v[{b}:{b+3}], v2, s[4:7], 0 offen offset:{1024*it}
        buffer_load_dwordx4 v[{b+4}:{b+7}], v2, s[4:7], 0 offen offset:{1024*it+4}
        buffer_load_dwordx2 v[{b+8}:{b+9}], v2, s[4:7], 0 offen offset:{1024*it+16}
        """)
    a(f"""
    s_and_b32 s20, s2, 31            ; head
    s_lshr_b32 s21, s2, 5
    s_lshl_b32 s25, s20, 16
    s_lshl_b32 s27, s22, 14
    s_add_u32 s25, s25, s27
    s_add_u32 s25, s25, {WS_KVP}
    s_add_u32 s27, s27, {PB}
    """)
    for j in range(16):
        a(f"s_add_u32 m0, s27, {1024*j}\ns_add_u32 s29, s25, {1024*j}\nbuffer_load_dwordx4 v2, s[12:15], s29 offen lds")
    a(f"""
    s_and_b32 s27, s22, 1
    s_lshl_b32 s27, s27, 10
    s_lshl_b32 s25, s20, 11
    s_add_u32 s25, s25, s27
    s_add_u32 s25, s25, {WS_ZP}
    s_add_u32 m0, s27, {ZB}
    s_nop 0
    buffer_load_dwordx4 v2, s[12:15], s25 offen lds
    s_lshl_b32 s27, s21, 3
    s_lshl_b32 s25, s22, 1
    s_add_u32 s27, s27, s25
    s_lshl_b32 s27, s27, 5
    s_add_u32 s27, s27, s20
    s_lshl_b32 s27, s27, 11
    s_add_u32 s28, s27, {WS_PQ}
    s_add_u32 s31, s27, {WS_O}
    s_add_u32 s29, s28, 65536
    buffer_load_dwordx4 v[176:179], v2, s[12:15], s28 offen
    buffer_load_dwordx4 v[180:183], v2, s[12:15], s28 offen offset:1024
    buffer_load_dwordx4 v[184:187], v2, s[12:15], s29 offen
    buffer_load_dwordx4 v[188:191], v2, s[12:15], s29 offen offset:1024
    s_add_u32 s27, s24, {WS_KT}
    s_add_u32 s28, s26, {KP+512}
    """)
    for i in range(4):
        a(f"s_add_u32 m0, s28, {1024*i}\ns_add_u32 s29, s27, {1024*i}\nbuffer_load_dwordx4 v2, s[12:15], s29 offen lds")
    a(f"""
    s_mov_b32 s8, s38
    s_mov_b32 s9, s39
    s_mov_b32 s10, 2048
    s_mov_b32 s11, 0x00020000
    s_lshl_b32 s25, s23, 1
    v_mov_b32 v3, s25
    buffer_load_ushort v14, v3, s[8:11], 0 offen
    s_add_u32 s48, s36, {WS_FLG}
    s_addc_u32 s49, s37, 0
    s_mov_b32 s50, 4096
    s_mov_b32 s51, 0x00020000
    s_mov_b32 s52, s40
    s_mov_b32 s53, s41
    s_mov_b32 s54, 0x200000
    s_mov_b32 s55, 0x00020000
    s_mov_b32 s56, s44
    s_mov_b32 s57, s45
    s_mov_b32 s58, 0x800000
    s_mov_b32 s59, 0x00020000
    v_mov_b32 v4, 0
    v_mov_b32 v5, 0
    v_mov_b32 v6, 0
    v_mov_b32 v7, 0
    v_lshlrev_b32 v3, 3, v1
    v_add_u32 v3, s26, v3
    ds_write_b64 v3, v[4:5] offset:{KP}
    v_and_b32 v8, 7, v1
    v_lshlrev_b32 v8, 3, v8
    v_add_u32 v8, s26, v8
    ds_write_b64 v8, v[4:5] offset:{KP+4608}
    v_and_b32 v3, 31, v1
    v_lshrrev_b32 v8, 3, v3
    v_and_b32 v3, 7, v3
    v_add_u32 v9, 256, v3
    v_cmp_gt_u32 vcc, 2, v3
    v_cndmask_b32 v3, v9, v3, vcc
    v_lshlrev_b32 v3, 4, v3
    v_mul_u32_u24 v8, {CS}, v8
    v_add3_u32 v3, v3, v8, s26
    ds_write_b128 v3, v[4:7]
    v_add_u32 v3, s26, v2
    """)
    TOT = 12 + 17 + 4 + 4 + 1
    E = 100
    for it in range(4):
        b = S0 + 12 * it
        e = E + 8 * (it % 2)
        a(f"s_waitcnt vmcnt({TOT - 3*(it+1)})")
        d = [b, b + 1, b + 2, b + 3, b + 8, b + 9]
        for k in range(4):
            a(f"v_alignbyte_b32 v{e+k}, v{d[k+1]}, v{d[k]}, 2")
        for k in range(4):
            a(f"v_alignbyte_b32 v{e+4+k}, v{d[k+2]}, v{d[k+1]}, 2")
        o = 32 + 1024 * it
        a(f"""
        ds_write_b128 v3, v[{b}:{b+3}] offset:{o}
        ds_write_b128 v3, v[{e}:{e+3}] offset:{CS+o}
        ds_write_b128 v3, v[{b+4}:{b+7}] offset:{2*CS+o}
        ds_write_b128 v3, v[{e+4}:{e+7}] offset:{3*CS+o}
        """)
    a(f"""
    s_lshl_b32 s27, s22, 10
    s_add_u32 s27, s27, {PB}
    v_add_u32 v3, s27, v2
    v_lshlrev_b32 v4, 2, v1
    v_add_u32 v4, {ZB}, v4
    s_waitcnt vmcnt(9)
    s_barrier
    """)
    st.stamp()
    for p in range(8):
        a(f"ds_read_b32 v{112+p}, v4 offset:{256*p}")
    for p in range(16):
        a(f"ds_read_b128 v[{48+4*p}:{51+4*p}], v3 offset:{4096*p}")
    a(f"""
    s_waitcnt lgkmcnt(15)
    v_add_f32 v112, v112, v113
    v_add_f32 v114, v114, v115
    v_add_f32 v116, v116, v117
    v_add_f32 v118, v118, v119
    v_add_f32 v112, v112, v114
    v_add_f32 v116, v116, v118
    v_add_f32 v112, v112, v116
    v_mov_b32 v113, v112
    s_nop 1
    v_permlane32_swap_b32 v112, v113
    s_nop 1
    v_add_f32 v112, v112, v113
    s_lshl_b32 s27, s22, 7
    s_add_u32 s27, s27, {ZS}
    v_and_b32 v5, 31, v1
    v_lshlrev_b32 v5, 2, v5
    v_add_u32 v5, s27, v5
    ds_write_b32 v5, v112
    v_lshrrev_b32 v5, 5, v1
    v_lshlrev_b32 v5, 6, v5
    v_add_u32 v5, s27, v5
    s_waitcnt lgkmcnt(0)
    ds_read_b128 v[120:123], v5
    ds_read_b128 v[124:127], v5 offset:16
    ds_read_b128 v[128:131], v5 offset:32
    ds_read_b128 v[132:135], v5 offset:48
    """)
    step = 1
    while step < 16:
        for p in range(0, 16, 2 * step):
            for h in range(2):
                x = 48 + 4 * p + 2 * h; y = 48 + 4 * (p + step) + 2 * h
                a(f"v_pk_add_f32 v[{x}:{x+1}], v[{x}:{x+1}], v[{y}:{y+1}]")
        step *= 2
    a(f"""
    v_cvt_pk_bf16_f32 v52, v48, v49
    v_cvt_pk_bf16_f32 v53, v50, v51
    v_lshlrev_b32 v6, 5, v1
    v_add_u32 v6, {KVX}, v6
    s_lshl_b32 s27, s22, 3
    v_add_u32 v7, s27, v6
    ds_write_b64 v7, v[52:53]
    s_waitcnt lgkmcnt(0)
    s_barrier
    ds_read_b128 v[96:99], v6
    ds_read_b128 v[100:103], v6 offset:16
    """)
    KA = 96
    for j in range(8):
        a(f"v_cvt_pk_bf16_f32 v{KA+8+j}, v{120+2*j}, v{121+2*j}")
    a("s_mov_b32 s30, 0x358637bd\ns_waitcnt vmcnt(5) lgkmcnt(0)")
    PQ = 176; NUM = [16, 48]; DEN = [32, 64]
    for r in range(2):
        p = PQ + 8 * r
        N = f"v[{NUM[r]}:{NUM[r]+15}]"; Dn = f"v[{DEN[r]}:{DEN[r]+15}]"
        a(f"""
        v_mfma_f32_32x32x16_bf16 {Dn}, v[{KA+8}:{KA+11}], v[{p}:{p+3}], 0
        v_mfma_f32_32x32x16_bf16 {N}, v[{KA}:{KA+3}], v[{p}:{p+3}], 0
        v_mfma_f32_32x32x16_bf16 {Dn}, v[{KA+12}:{KA+15}], v[{p+4}:{p+7}], {Dn}
        v_mfma_f32_32x32x16_bf16 {N}, v[{KA+4}:{KA+7}], v[{p+4}:{p+7}], {N}
        """)
    a(f"""
    v_lshrrev_b32 v13, 3, v1
    v_lshlrev_b32 v13, 11, v13
    s_lshl_b32 s3, s19, 7
    v_add_u32 v13, s3, v13
    v_and_b32 v8, 7, v1
    v_lshrrev_b32 v9, 4, v1
    v_and_b32 v9, 1, v9
    v_lshlrev_b32 v9, 2, v9
    v_xor_b32 v8, v8, v9
    v_lshlrev_b32 v8, 4, v8
    v_add_u32 v13, v13, v8
    """)
    for r in range(2):
        p = PQ + 8 * r; Nn = NUM[r]; Dd = DEN[r]
        a(f"""
        v_cvt_pk_bf16_f32 v4, v{Dd}, v{Dd}
        v_lshlrev_b32 v4, 16, v4
        v_add_f32 v4, s30, v4
        v_cvt_pk_bf16_f32 v4, v4, v4
        v_lshlrev_b32 v4, 16, v4
        v_rcp_f32 v4, v4
        """)
        for j in range(8): a(f"v_pk_mul_f32 v[{Nn+2*j}:{Nn+2*j+1}], v[{Nn+2*j}:{Nn+2*j+1}], v[4:5] op_sel_hi:[1,0]")
        for j in range(8): a(f"v_cvt_pk_bf16_f32 v{p+j}, v{Nn+2*j}, v{Nn+2*j+1}")
        a(f"""
        buffer_store_dwordx4 v[{p}:{p+3}], v2, s[12:15], s31 offen
        buffer_store_dwordx4 v[{p+4}:{p+7}], v2, s[12:15], s31 offen offset:1024
        s_add_u32 s31, s31, 65536
        """)
    def chunk_dma(lds_sgpr, chunk_sgpr_bytes):
        for j in range(16):
            a(f"s_add_u32 m0, s{lds_sgpr}, {1024*j}\ns_add_u32 s29, s{chunk_sgpr_bytes}, {16384*j}\nbuffer_load_dwordx4 v13, s[52:55], s29 offen lds")
    a(f"""
    s_lshl_b32 s27, s22, 14
    s_add_u32 s27, s27, {PB}
    s_lshl_b32 s28, s22, 18
    """)
    slab = [f"s_add_u32 m0, s27, {1024*j}\ns_add_u32 s29, s28, {16384*j}\nbuffer_load_dwordx4 v13, s[52:55], s29 offen lds" for j in range(16)]
    st.stamp()
    a(f"""
    v_and_b32 v4, 15, v1
    v_lshrrev_b32 v5, 4, v1
    v_sub_u32 v6, 3, v4
    v_and_b32 v6, 3, v6
    v_mul_u32_u24 v6, {CS}, v6
    v_lshrrev_b32 v7, 2, v4
    v_lshlrev_b32 v7, 3, v7
    v_lshlrev_b32 v8, 4, v5
    v_add_u32 v6, v6, v8
    v_sub_u32 v6, v6, v7
    v_add_u32 v6, 24, v6
    v_add_u32 v6, s26, v6
    v_lshlrev_b32 v7, 5, v4
    v_add3_u32 v7, v7, v8, s26
    v_add_u32 v7, {KP}, v7
    s_lshl_b32 s3, s21, 8
    v_mov_b32 v11, s3
    v_mov_b32 v12, 1
    """)
    for i in range(32): a(f"v_mov_b32 v{ACC+i}, 0")
    a("s_waitcnt vmcnt(4) lgkmcnt(0)")
    def reads(S, rho):
        out = []
        ii = range(9) if rho == 0 else range(8)
        ww = range(-1, 8) if rho == 0 else range(8)
        ra, rb = [], []
        for i in ii:
            q = rho + 8 * i
            off = 64 * (64 - q)
            ra.append([f"ds_read_b64 v[{S+4*i}:{S+4*i+1}], v6 offset:{off}", f"ds_read_b64 v[{S+4*i+2}:{S+4*i+3}], v6 offset:{off+8}"])
        for w in ww:
            r = 8 * w - rho
            rb.append([f"ds_read_b128 v[{S+36+4*(w+1)}:{S+36+4*(w+1)+3}], v7 offset:{64*(r+8)}"])
        for x, y in zip(ra, rb):
            out += y + x
        return out
    def mfmas(S, rho):
        out = []
        ii = range(9) if rho == 0 else range(8)
        ww = range(-1, 8) if rho == 0 else range(8)
        for i in ii:
            for w in ww:
                t = i + w
                if 0 <= t <= 7:
                    C = f"v[{ACC+4*t}:{ACC+4*t+3}]"
                    out.append(f"v_mfma_f32_16x16x32_bf16 {C}, v[{S+4*i}:{S+4*i+3}], v[{S+36+4*(w+1)}:{S+36+4*(w+1)+3}], {C}")
        return out
    for r in reads(S0, 0): a(r)
    for rho in range(8):
        S = S0 if rho % 2 == 0 else S1
        Sn = S1 if rho % 2 == 0 else S0
        a("s_waitcnt lgkmcnt(0)")
        if rho == 2:
            a("""
            s_waitcnt vmcnt(16)
            v_cmp_eq_u32 vcc, 0, v1
            s_and_saveexec_b64 s[60:61], vcc
            buffer_atomic_add v12, v11, s[48:51], 0 offen
            s_mov_b64 exec, -1
            """)
        ms = mfmas(S, rho)
        rd = reads(Sn, rho + 1) if rho < 7 else []
        if rho == 0: rd = rd + slab[0:8]
        if rho == 1: rd = rd + slab[8:16]
        k = 0
        for m in ms:
            a(m)
            if k < len(rd): a(rd[k]); k += 1
        while k < len(rd): a(rd[k]); k += 1
        if rho == 2:
            a(f"""
            s_lshl_b32 s28, s18, 2
            s_add_u32 s28, s28, s22
            s_lshl_b32 s28, s28, 16
            s_add_u32 s28, s28, {WS_O}
            s_lshr_b32 s3, s18, 1
            s_lshl_b32 s3, s3, 8
            v_mov_b32 v3, s3
            """)
    st.stamp()
    a(f"""
    v_lshlrev_b32 v8, 5, v4
    v_lshlrev_b32 v9, 3, v5
    v_add_u32 v8, v8, v9
    v_sub_u32 v9, {2*(2060-1792)}, v8
    v_add_u32 v9, s26, v9
    v_lshlrev_b32 v14, 16, v14
    v_mov_b32 v15, v14
    s_add_u32 s27, s24, {WS_YT}
    s_mov_b32 s30, 0xffff0000
    """)
    U = 48
    for t in range(8):
        a(f"ds_read_b64 v[{U+2*t}:{U+2*t+1}], v9 offset:{512*(7-t)}")
    a("s_waitcnt lgkmcnt(0)")
    a(f"s_lshl_b32 s25, s22, 18\ns_add_u32 s25, s25, {4<<18}")
    chunk_dma(26, 25)
    for t in range(8):
        T = 128 + 16 * (t % 4)
        y = ACC + 4 * t
        u0, u1 = U + 2 * t, U + 2 * t + 1
        a(f"""
        v_and_b32 v{T}, s30, v{u1}
        v_lshlrev_b32 v{T+1}, 16, v{u1}
        v_and_b32 v{T+2}, s30, v{u0}
        v_lshlrev_b32 v{T+3}, 16, v{u0}
        v_pk_fma_f32 v[{T}:{T+1}], v[{T}:{T+1}], v[14:15], v[{y}:{y+1}]
        v_pk_fma_f32 v[{T+2}:{T+3}], v[{T+2}:{T+3}], v[14:15], v[{y+2}:{y+3}]
        v_cvt_pk_bf16_f32 v{T+10}, v{T}, v{T+1}
        v_cvt_pk_bf16_f32 v{T+11}, v{T+2}, v{T+3}
        buffer_store_dwordx2 v[{T+10}:{T+11}], v8, s[12:15], s27 offen offset:{512*t}
        """)
    st.stamp()
    gemm2(a, st)
    a.label("L_k2_end")
    a("s_endpgm")
    return dict(vgpr=192, block=256, lds=LDS)

def gemm2(a, st):
    vm = VM(a)
    vm.q += ["D4"] * 16 + ["YS"] * 8
    a(f"""
    v_lshlrev_b32 v7, 4, v1
    s_lshr_b32 s3, s2, 5
    s_lshl_b32 s3, s3, 8
    s_add_u32 s3, s3, 2048
    v_mov_b32 v14, s3                ; y counter
    s_cmp_lg_u32 s22, 0
    s_cbranch_scc1 L_k23_o_ok
    """)
    a.label("L_k23_poll_o")
    a(f"""
    buffer_load_dword v4, v3, s[48:51], 0 offen sc1
    s_waitcnt vmcnt(0)
    v_readfirstlane_b32 s3, v4
    s_nop 1
    s_cmp_ge_u32 s3, 128
    s_cbranch_scc1 L_k23_o_ok
    s_sleep 8
    s_branch L_k23_poll_o
    """)
    a.label("L_k23_o_ok")
    a("s_waitcnt vmcnt(24)\ns_barrier")
    st.stamp()
    AB = [64, 96, 128]
    def Aload(c):
        B = AB[c % 3]
        for n in range(8):
            off = (8 * c + n) * 1024
            vm.issue(f"A{c}", f"s_add_u32 s29, s28, {off}\nbuffer_load_dwordx4 v[{B+4*n}:{B+4*n+3}], v7, s[12:15], s29 offen {SC}")
    Aload(0); Aload(1)
    YR = 16
    TB = PB
    a(f"""
    s_lshr_b32 s23, s2, 5
    s_lshl_b32 s23, s23, 7
    s_and_b32 s24, s2, 31
    s_lshl_b32 s24, s24, 6
    v_lshrrev_b32 v4, 3, v0
    v_and_b32 v5, 7, v0
    v_lshlrev_b32 v5, 4, v5
    v_add_u32 v3, s23, v4
    v_lshlrev_b32 v3, 12, v3
    v_add_u32 v3, v3, v5
    s_lshl_b32 s25, s24, 1
    s_add_u32 s25, s25, {WS_YT}
    v_mul_u32_u24 v15, {TP}, v4
    v_add_u32 v15, v15, v5
    v_add_u32 v15, {TB}, v15
    v_and_b32 v2, 15, v1
    v_lshrrev_b32 v4, 2, v2
    v_and_b32 v5, 3, v2
    v_lshrrev_b32 v9, 4, v1
    v_lshlrev_b32 v8, 3, v9
    v_add_u32 v8, v8, v4
    s_lshl_b32 s26, s22, 5
    v_add_u32 v8, s26, v8
    v_mul_u32_u24 v8, {TP}, v8
    v_lshlrev_b32 v5, 3, v5
    v_add_u32 v8, v8, v5
    v_add_u32 v8, {TB}, v8
    v_add_u32 v2, s24, v2
    v_lshlrev_b32 v2, 12, v2
    v_lshlrev_b32 v9, 4, v9
    v_add_u32 v9, v2, v9
    s_lshl_b32 s26, s22, 6
    s_lshl_b32 s30, s23, 1
    s_add_u32 s26, s26, s30
    s_add_u32 s30, s26, 2048
    v_lshrrev_b32 v10, 5, v1
    v_lshlrev_b32 v10, 2, v10
    v_and_b32 v11, 15, v1
    v_lshrrev_b32 v11, 2, v11
    v_add_u32 v10, v10, v11
    v_lshlrev_b32 v10, 7, v10
    v_lshrrev_b32 v6, 4, v1
    v_and_b32 v6, 1, v6
    v_lshlrev_b32 v6, 1, v6
    v_and_b32 v13, 3, v1
    v_lshrrev_b32 v2, 1, v13
    v_add_u32 v6, v6, v2
    v_lshrrev_b32 v11, 1, v11
    v_and_b32 v11, 1, v11
    v_lshlrev_b32 v11, 2, v11
    v_xor_b32 v6, v6, v11
    v_lshlrev_b32 v6, 4, v6
    v_add_u32 v10, v10, v6
    v_and_b32 v13, 1, v13
    v_lshlrev_b32 v13, 3, v13
    v_add_u32 v6, v10, v13
    v_xor_b32 v13, 64, v6            ; ct1
    v_add_u32 v10, {PB}, v6          ; chunks 0..3
    v_add_u32 v11, {PB}, v13
    v_add_u32 v4, {3*WR}, v6         ; chunk 7
    v_add_u32 v5, {3*WR}, v13
    """)
    ACC = 32; BB = 160
    def breads(n):
        c = n >> 3
        if c < 4: ra, base = (10, 11), c * 16384
        elif c < 7: ra, base = (6, 13), (c - 4) * WR
        else: ra, base = (4, 5), 0
        R = BB + 8 * (n % 4)
        out = []
        for ct in range(2):
            for hh in range(2):
                off = base + ((n & 7) * 16 + 8 * hh) * 128
                out.append(f"ds_read_b64_tr_b16 v[{R+4*ct+2*hh}:{R+4*ct+2*hh+1}], v{ra[ct]} offset:{off}")
        return out
    for n in range(3):
        for r in breads(n): a(r)
    vm.wait("A0")
    st.stamp()
    for n in range(64):
        c = n >> 3
        if n % 8 == 0 and n > 0:
            vm.wait(f"A{c}")
        if n in (28, 44):
            a("s_barrier")
        inflight = min(2, 63 - n) * 4
        a(f"s_waitcnt lgkmcnt({inflight})")
        R = BB + 8 * (n % 4)
        Af = AB[c % 3] + 4 * (n & 7)
        rd = breads(n + 3) if n + 3 < 64 else []
        for ct in range(2):
            C = f"v[{ACC+16*ct}:{ACC+16*ct+15}]"
            a(f"v_mfma_f32_32x32x16_bf16 {C}, v[{R+4*ct}:{R+4*ct+3}], v[{Af}:{Af+3}], {'0' if n == 0 else C}")
            for r in rd[2*ct:2*ct+2]: a(r)
        if n == 6:
            vm.wait("YS")
            a("v_cmp_eq_u32 vcc, 0, v1\ns_and_saveexec_b64 s[60:61], vcc")
            vm.issue("AT", "buffer_atomic_add v12, v14, s[48:51], 0 offen")
            a("s_mov_b64 exec, -1")
        if n == 28:
            for i in range(4):
                vm.issue("Y", f"s_add_u32 s26, s25, {i*32*4096}\nbuffer_load_dwordx4 v[{YR+4*i}:{YR+4*i+3}], v3, s[12:15], s26 offen {SC}")
        if n % 8 == 4:
            if c + 2 < 8: Aload(c + 2)
        if n == 26:
            a("s_cmp_lg_u32 s22, 0\ns_cbranch_scc1 L_k23_y_ok")
            a.label("L_k23_poll_y")
            a(f"""
            buffer_load_dword v2, v14, s[48:51], 0 offen sc1
            s_waitcnt vmcnt(0)
            v_readfirstlane_b32 s3, v2
            s_nop 1
            s_cmp_ge_u32 s3, 128
            s_cbranch_scc1 L_k23_y_ok
            s_sleep 8
            s_branch L_k23_poll_y
            """)
            a.label("L_k23_y_ok")
        if n == 40:
            for i in range(4):
                a(f"ds_write_b128 v15, v[{YR+4*i}:{YR+4*i+3}] offset:{32*i*TP}")
        if n == 45:
            for cg in range(4):
                for h in range(2):
                    a(f"ds_read_b64_tr_b16 v[{YR+4*cg+2*h}:{YR+4*cg+2*h+1}], v8 offset:{4*h*TP + 32*cg}")
        if n == 49:
            for cg in range(4):
                vm.issue("S", f"s_add_u32 s29, s30, {cg*16*4096}\nbuffer_store_dwordx4 v[{YR+4*cg}:{YR+4*cg+3}], v9, s[56:59], s29 offen NOSF")
    st.stamp()
    a(f"""
    v_and_b32 v2, 31, v1
    s_lshl_b32 s26, s18, 7
    s_lshl_b32 s29, s22, 5
    s_add_u32 s26, s26, s29
    v_add_u32 v2, s26, v2
    v_lshlrev_b32 v2, 12, v2
    v_lshrrev_b32 v3, 5, v1
    v_lshlrev_b32 v3, 3, v3
    v_add_u32 v2, v2, v3
    s_lshl_b32 s26, s19, 7
    """)
    for j in range(16):
        a(f"v_cvt_pk_bf16_f32 v{64+j}, v{ACC+2*j}, v{ACC+2*j+1}")
    for ct in range(2):
        for g4 in range(4):
            r = 64 + 8 * ct + 2 * g4
            a(f"buffer_store_dwordx2 v[{r}:{r+1}], v2, s[56:59], s26 offen offset:{64*ct+16*g4} NOSF")
    st.stamp(); st.dump(22)
    a("s_endpgm")
```

```python
from asmlib import Asm
from layout import *
from stamps import Stamps

CS = 4288
KP = 4 * CS
WR = KP + 4608 + 64

def gen(a: Asm):
    a(f"""
    s_cmp_ge_u32 s2, 256
    s_cbranch_scc1 L_k2_end
    s_load_dwordx2 s[36:37], s[0:1], 96      ; ws
    s_load_dwordx2 s[38:39], s[0:1], 72      ; D_skip
    v_and_b32 v1, 63, v0
    v_lshrrev_b32 v2, 6, v0
    s_nop 0
    v_readfirstlane_b32 s22, v2
    s_waitcnt lgkmcnt(0)
    s_mov_b32 s12, s36
    s_mov_b32 s13, s37
    s_mov_b32 s14, 0x10000000
    s_mov_b32 s15, 0x00020000
    s_cmp_eq_u32 s22, 4
    s_cbranch_scc1 L_k2_otask
    """)
    conv(a)
    a.label("L_k2_otask")
    otask(a)
    a.label("L_k2_end")
    a("s_endpgm")
    return dict(vgpr=192, block=320, lds=4 * WR + 65536 + 2048 + 128)

def conv(a, end=True):
    ACC = 16; S0 = 48; S1 = 120
    st = Stamps(a, 1); st.stamp()
    a(f"""
    s_lshl_b32 s23, s2, 2
    s_add_u32 s23, s23, s22          ; channel d
    s_mul_i32 s26, s22, {WR}
    s_lshl_b32 s24, s23, 12          ; d*4096
    s_add_u32 s4, s36, s24
    s_addc_u32 s5, s37, 0
    s_add_u32 s4, s4, {WS_UT}
    s_addc_u32 s5, s5, 0
    s_mov_b32 s6, 4096
    s_mov_b32 s7, 0x00020000
    v_lshlrev_b32 v2, 4, v1          ; lane*16
    """)
    for it in range(4):
        b = S0 + 12 * it
        a(f"""
        buffer_load_dwordx4 v[{b}:{b+3}], v2, s[4:7], 0 offen offset:{1024*it}
        buffer_load_dwordx4 v[{b+4}:{b+7}], v2, s[4:7], 0 offen offset:{1024*it+4}
        buffer_load_dwordx2 v[{b+8}:{b+9}], v2, s[4:7], 0 offen offset:{1024*it+16}
        """)
    a(f"""
    s_add_u32 s27, s24, {WS_KT}
    s_add_u32 s28, s26, {KP+512}
    """)
    for i in range(4):
        a(f"""
        s_add_u32 m0, s28, {1024*i}
        s_add_u32 s29, s27, {1024*i}
        buffer_load_dwordx4 v2, s[12:15], s29 offen lds
        """)
    a(f"""
    s_mov_b32 s8, s38
    s_mov_b32 s9, s39
    s_mov_b32 s10, 2048
    s_mov_b32 s11, 0x00020000
    s_lshl_b32 s25, s23, 1
    v_mov_b32 v3, s25
    buffer_load_ushort v14, v3, s[8:11], 0 offen
    v_mov_b32 v4, 0
    v_mov_b32 v5, 0
    v_mov_b32 v6, 0
    v_mov_b32 v7, 0
    v_lshlrev_b32 v3, 3, v1
    v_add_u32 v3, s26, v3
    ds_write_b64 v3, v[4:5] offset:{KP}
    v_and_b32 v8, 7, v1
    v_lshlrev_b32 v8, 3, v8
    v_add_u32 v8, s26, v8
    ds_write_b64 v8, v[4:5] offset:{KP+4608}
    v_and_b32 v3, 31, v1
    v_lshrrev_b32 v8, 3, v3          ; s
    v_and_b32 v3, 7, v3              ; j
    v_add_u32 v9, 256, v3
    v_cmp_gt_u32 vcc, 2, v3
    v_cndmask_b32 v3, v9, v3, vcc
    v_lshlrev_b32 v3, 4, v3
    v_mul_u32_u24 v8, {CS}, v8
    v_add3_u32 v3, v3, v8, s26
    ds_write_b128 v3, v[4:7]
    v_add_u32 v3, s26, v2
    """)
    E = 100
    for it in range(4):
        b = S0 + 12 * it
        e = E + 8 * (it % 2)
        a(f"s_waitcnt vmcnt({17 - 3*(it+1)})")
        d = [b, b + 1, b + 2, b + 3, b + 8, b + 9]
        for k in range(4):
            a(f"v_alignbyte_b32 v{e+k}, v{d[k+1]}, v{d[k]}, 2")
        for k in range(4):
            a(f"v_alignbyte_b32 v{e+4+k}, v{d[k+2]}, v{d[k+1]}, 2")
        o = 32 + 1024 * it
        a(f"""
        ds_write_b128 v3, v[{b}:{b+3}] offset:{o}
        ds_write_b128 v3, v[{e}:{e+3}] offset:{CS+o}
        ds_write_b128 v3, v[{b+4}:{b+7}] offset:{2*CS+o}
        ds_write_b128 v3, v[{e+4}:{e+7}] offset:{3*CS+o}
        """)
    a(f"""
    v_and_b32 v4, 15, v1             ; b / a
    v_lshrrev_b32 v5, 4, v1          ; kg / g
    v_sub_u32 v6, 3, v4
    v_and_b32 v6, 3, v6              ; s
    v_mul_u32_u24 v6, {CS}, v6
    v_lshrrev_b32 v7, 2, v4
    v_lshlrev_b32 v7, 3, v7          ; 2*4*(b>>2)
    v_lshlrev_b32 v8, 4, v5          ; 2*8*kg
    v_add_u32 v6, v6, v8
    v_sub_u32 v6, v6, v7
    v_add_u32 v6, 24, v6
    v_add_u32 v6, s26, v6            ; A base
    v_lshlrev_b32 v7, 5, v4
    v_add3_u32 v7, v7, v8, s26
    v_add_u32 v7, {KP}, v7           ; B base
    """)
    for i in range(32): a(f"v_mov_b32 v{ACC+i}, 0")
    a("s_waitcnt vmcnt(0) lgkmcnt(0)")
    st.stamp()
    def reads(S, rho):
        out = []
        ii = range(9) if rho == 0 else range(8)
        ww = range(-1, 8) if rho == 0 else range(8)
        ra, rb = [], []
        for i in ii:
            q = rho + 8 * i
            off = 64 * (64 - q)
            ra.append([f"ds_read_b64 v[{S+4*i}:{S+4*i+1}], v6 offset:{off}", f"ds_read_b64 v[{S+4*i+2}:{S+4*i+3}], v6 offset:{off+8}"])
        for w in ww:
            r = 8 * w - rho
            rb.append([f"ds_read_b128 v[{S+36+4*(w+1)}:{S+36+4*(w+1)+3}], v7 offset:{64*(r+8)}"])
        for x, y in zip(ra, rb):
            out += y + x
        return out
    def mfmas(S, rho):
        out = []
        ii = range(9) if rho == 0 else range(8)
        ww = range(-1, 8) if rho == 0 else range(8)
        for i in ii:
            for w in ww:
                t = i + w
                if 0 <= t <= 7:
                    C = f"v[{ACC+4*t}:{ACC+4*t+3}]"
                    out.append(f"v_mfma_f32_16x16x32_bf16 {C}, v[{S+4*i}:{S+4*i+3}], v[{S+36+4*(w+1)}:{S+36+4*(w+1)+3}], {C}")
        return out
    for r in reads(S0, 0): a(r)
    for rho in range(8):
        S = S0 if rho % 2 == 0 else S1
        Sn = S1 if rho % 2 == 0 else S0
        a("s_waitcnt lgkmcnt(0)")
        ms = mfmas(S, rho)
        rd = reads(Sn, rho + 1) if rho < 7 else []
        k = 0
        for m in ms:
            a(m)
            if k < len(rd): a(rd[k]); k += 1
        while k < len(rd): a(rd[k]); k += 1
    st.stamp()
    a(f"""
    v_lshlrev_b32 v8, 5, v4          ; 32a
    v_lshlrev_b32 v9, 3, v5          ; 8g
    v_add_u32 v8, v8, v9
    v_sub_u32 v9, {2*(2060-1792)}, v8
    v_add_u32 v9, s26, v9
    v_lshlrev_b32 v14, 16, v14
    v_mov_b32 v15, v14
    s_add_u32 s27, s24, {WS_YT}
    s_mov_b32 s30, 0xffff0000
    """)
    U = 48
    for t in range(8):
        a(f"ds_read_b64 v[{U+2*t}:{U+2*t+1}], v9 offset:{512*(7-t)}")
    a("s_waitcnt lgkmcnt(0)")
    for t in range(8):
        T = 64 + 16 * (t % 4)
        y = ACC + 4 * t
        u0, u1 = U + 2 * t, U + 2 * t + 1
        a(f"""
        v_and_b32 v{T}, s30, v{u1}
        v_lshlrev_b32 v{T+1}, 16, v{u1}
        v_and_b32 v{T+2}, s30, v{u0}
        v_lshlrev_b32 v{T+3}, 16, v{u0}
        v_pk_fma_f32 v[{T}:{T+1}], v[{T}:{T+1}], v[14:15], v[{y}:{y+1}]
        v_pk_fma_f32 v[{T+2}:{T+3}], v[{T+2}:{T+3}], v[14:15], v[{y+2}:{y+3}]
        v_cvt_pk_bf16_f32 v{T+10}, v{T}, v{T+1}
        v_cvt_pk_bf16_f32 v{T+11}, v{T+2}, v{T+3}
        buffer_store_dwordx2 v[{T+10}:{T+11}], v8, s[12:15], s27 offen offset:{512*t}
        """)
    st.stamp(); st.dump(22, 188)
    if end: a("s_endpgm")

def otask(a, end=True, after_sum=None):
    PB = 4 * WR
    KV = 16
    T = 32
    PQ = 112
    st = Stamps(a, 1); st.stamp()
    a(f"""
    s_setprio 3
    s_and_b32 s23, s2, 31            ; head
    s_lshr_b32 s24, s2, 5
    v_lshlrev_b32 v2, 4, v1          ; lane*16
    s_lshl_b32 s25, s23, 16
    s_add_u32 s25, s25, {WS_KVP}
    s_lshl_b32 s26, s23, 11
    s_add_u32 s26, s26, {WS_ZP}
    s_lshl_b32 s27, s24, 8
    s_add_u32 s27, s27, s23
    s_lshl_b32 s27, s27, 11
    s_add_u32 s28, s27, {WS_PQ}
    s_add_u32 s29, s27, {WS_O}
    s_mov_b32 m0, {PB+65536}
    s_add_u32 s30, s26, 1024
    buffer_load_dwordx4 v2, s[12:15], s26 offen lds
    s_mov_b32 m0, {PB+65536+1024}
    s_nop 0
    buffer_load_dwordx4 v2, s[12:15], s30 offen lds
    s_mov_b32 s31, {PB}
    s_mov_b32 s3, 0
    """)
    a.label("L_o_dma")
    for j in range(4):
        a(f"""
        s_add_u32 m0, s31, {1024*j}
        s_add_u32 s30, s25, {1024*j}
        buffer_load_dwordx4 v2, s[12:15], s30 offen lds
        """)
    a("s_add_u32 s31, s31, 4096\ns_add_u32 s25, s25, 4096\ns_add_u32 s3, s3, 1\ns_cmp_lt_u32 s3, 16\ns_cbranch_scc1 L_o_dma")
    for r in range(8):
        a(f"""
        buffer_load_dwordx4 v[{PQ+8*r}:{PQ+8*r+3}], v2, s[12:15], s28 offen
        buffer_load_dwordx4 v[{PQ+8*r+4}:{PQ+8*r+7}], v2, s[12:15], s28 offen offset:1024
        s_add_u32 s28, s28, 65536
        """)
    a(f"""
    v_add_u32 v3, {PB}, v2
    v_lshlrev_b32 v4, 2, v1          ; l*4 = i*4 + h*128
    v_add_u32 v4, {PB+65536}, v4
    s_waitcnt vmcnt(16)
    """)
    st.stamp()
    for p in range(8):
        a(f"ds_read_b32 v{96+p}, v4 offset:{256*p}")
    for b in range(4):
        for p in range(4):
            for j in range(4):
                dst = (KV + 4 * j) if (b == 0 and p == 0) else (T + 16 * p + 4 * j)
                a(f"ds_read_b128 v[{dst}:{dst+3}], v3 offset:{(4*b+p)*4096 + 1024*j}")
        if b == 0:
            a("s_waitcnt lgkmcnt(15)")
            a(f"""
            v_add_f32 v96, v96, v97
            v_add_f32 v98, v98, v99
            v_add_f32 v100, v100, v101
            v_add_f32 v102, v102, v103
            v_add_f32 v96, v96, v98
            v_add_f32 v100, v100, v102
            v_add_f32 v96, v96, v100
            v_mov_b32 v97, v96
            s_nop 1
            v_permlane32_swap_b32 v96, v97
            s_nop 1
            v_add_f32 v96, v96, v97
            v_and_b32 v5, 31, v1
            v_lshlrev_b32 v5, 2, v5
            v_add_u32 v5, {PB+65536+2048}, v5
            """)
        a("s_waitcnt lgkmcnt(0)")
        if b == 0:
            a("ds_write_b32 v5, v96")
        for p in range(4):
            if b == 0 and p == 0: continue
            for j in range(8):
                a(f"v_pk_add_f32 v[{KV+2*j}:{KV+2*j+1}], v[{KV+2*j}:{KV+2*j+1}], v[{T+16*p+2*j}:{T+16*p+2*j+1}]")
    a(f"""
    v_lshrrev_b32 v5, 5, v1
    v_lshlrev_b32 v5, 6, v5
    v_add_u32 v5, {PB+65536+2048}, v5
    s_waitcnt lgkmcnt(0)
    ds_read_b128 v[32:35], v5
    ds_read_b128 v[36:39], v5 offset:16
    ds_read_b128 v[40:43], v5 offset:32
    ds_read_b128 v[44:47], v5 offset:48
    """)
    KA = 96
    for j in range(8):
        a(f"v_cvt_pk_bf16_f32 v{KA+j}, v{KV+2*j}, v{KV+2*j+1}")
    a("s_waitcnt lgkmcnt(0)")
    for j in range(8):
        a(f"v_cvt_pk_bf16_f32 v{KA+8+j}, v{32+2*j}, v{33+2*j}")
    a("s_mov_b32 s31, 0x358637bd\ns_waitcnt vmcnt(0)")
    if after_sum: after_sum()
    st.stamp()
    NUM = [16, 48]; DEN = [32, 64]
    def mm(r):
        p = PQ + 8 * r
        N = f"v[{NUM[r%2]}:{NUM[r%2]+15}]"; Dn = f"v[{DEN[r%2]}:{DEN[r%2]+15}]"
        return [f"v_mfma_f32_32x32x16_bf16 {Dn}, v[{KA+8}:{KA+11}], v[{p}:{p+3}], 0",
                f"v_mfma_f32_32x32x16_bf16 {N}, v[{KA}:{KA+3}], v[{p}:{p+3}], 0",
                f"v_mfma_f32_32x32x16_bf16 {Dn}, v[{KA+12}:{KA+15}], v[{p+4}:{p+7}], {Dn}",
                f"v_mfma_f32_32x32x16_bf16 {N}, v[{KA+4}:{KA+7}], v[{p+4}:{p+7}], {N}"]
    def fin(r):
        p = PQ + 8 * r; Nn = NUM[r % 2]; Dd = DEN[r % 2]
        out = [f"v_cvt_pk_bf16_f32 v4, v{Dd}, v{Dd}", "v_lshlrev_b32 v4, 16, v4", "v_add_f32 v4, s31, v4",
               "v_cvt_pk_bf16_f32 v4, v4, v4", "v_lshlrev_b32 v4, 16, v4", "v_rcp_f32 v4, v4"]
        out += [f"v_pk_mul_f32 v[{Nn+2*j}:{Nn+2*j+1}], v[{Nn+2*j}:{Nn+2*j+1}], v[4:5] op_sel_hi:[1,0]" for j in range(8)]
        out += [f"v_cvt_pk_bf16_f32 v{p+j}, v{Nn+2*j}, v{Nn+2*j+1}" for j in range(8)]
        out += [f"buffer_store_dwordx4 v[{p}:{p+3}], v2, s[12:15], s29 offen",
                f"buffer_store_dwordx4 v[{p+4}:{p+7}], v2, s[12:15], s29 offen offset:1024",
                "s_add_u32 s29, s29, 65536"]
        return out
    for m in mm(0): a(m)
    for r in range(8):
        nxt = mm(r + 1) if r < 7 else []
        for m in nxt: a(m)
        for f in fin(r): a(f)
    st.stamp(); st.dump(22, 188)
    if end: a("s_endpgm")
```
